```python
import torch

def _softmax(x, axis=-1):
    return torch.softmax(x, dim=axis)
def _gelu(x):
    return torch.nn.functional.gelu(x, approximate="tanh")
def _silu(x):
    return torch.nn.functional.silu(x)
def _sigmoid(x):
    return torch.sigmoid(x)
def _layernorm(x, axis=-1, eps=1e-5):
    m = x.mean(dim=axis, keepdim=True)
    v = x.var(dim=axis, keepdim=True, unbiased=False)
    return (x - m) / torch.sqrt(v + eps)
def _scatter_add(tgt, idx, src, axis=0):
    return tgt.clone().index_add_(axis, idx, src)
def _segment_sum(src, seg, n):
    out = torch.zeros((n,) + src.shape[1:], dtype=src.dtype)
    return out.index_add_(0, seg, src)
def _pad(x, pw):
    flat = tuple(v for pair in reversed(pw) for v in pair)
    return torch.nn.functional.pad(x, flat)

kernel_name = 'recurrent_scan__linear_kernel_hedgehog__dense_activation_mish__prompt'

def setup_inputs():

    _w = (lambda a: (lambda t: t.to(torch.bfloat16) if t.is_floating_point() else t)(torch.as_tensor(a)))
    def _A_setup():
        B, S, D, H = 1, 2048, 512, 32
        Dh = D // H
        return {
            "x": _w((lambda *s: torch.randn(*s, dtype=torch.bfloat16) * 0.05)(B, S, D)),
            "wqkv": _w((lambda *s: torch.randn(*s, dtype=torch.bfloat16) * 0.4)(D, 3 * D)),
            "w_phi": _w((lambda *s: torch.randn(*s, dtype=torch.bfloat16) * 0.4)(H, Dh, Dh) * (Dh ** -0.5)),
            "wo": _w((lambda *s: torch.randn(*s, dtype=torch.bfloat16) * 0.2)(D, D)),
        }
    _A_in = _A_setup()

    def _B_setup():
        B, S, D, F = 1, 2048, 512, 1792
        return {
            "x": _w((lambda *s: torch.randn(*s, dtype=torch.bfloat16) * 0.05)(B, S, D)),
            "w1": _w((lambda *s: torch.randn(*s, dtype=torch.bfloat16) * 0.4)(D, F) * (D ** -0.5)),
            "b1": _w((lambda *s: torch.randn(*s, dtype=torch.bfloat16) * 0.1)(F)),
            "w2": _w((lambda *s: torch.randn(*s, dtype=torch.bfloat16) * 0.1)(F, D) * (F ** -0.5)),
        }
    _B_in = _B_setup()

    return {
        "A_x": _A_in["x"],
        "A_wqkv": _A_in["wqkv"],
        "A_w_phi": _A_in["w_phi"],
        "A_wo": _A_in["wo"],
        "B_x": _B_in["x"],
        "B_w1": _B_in["w1"],
        "B_b1": _B_in["b1"],
        "B_w2": _B_in["w2"],
    }

def reference(A_x, A_wqkv, A_w_phi, A_wo, B_x, B_w1, B_b1, B_w2):
    def _A_ref(x, wqkv, w_phi, wo):
        B, S, D = x.shape
        H = 32; Dh = D // H
        qkv = (lambda x, *d: x.permute(*d))((x @ wqkv).reshape(B, S, 3, H, Dh), 2, 0, 3, 1, 4)
        q, k, v = qkv[0], qkv[1], qkv[2]
        pq = torch.einsum("bhsd,hdf->bhsf", q, w_phi)
        pk = torch.einsum("bhsd,hdf->bhsf", k, w_phi)
        phi_q = torch.concatenate([_softmax(pq, axis=-1), _softmax(-pq, axis=-1)], axis=-1)
        phi_k = torch.concatenate([_softmax(pk, axis=-1), _softmax(-pk, axis=-1)], axis=-1)
        kv = torch.einsum("bhsf,bhsd->bhfd", phi_k, v)
        z  = torch.einsum("bhsf->bhf", phi_k)
        num = torch.einsum("bhqf,bhfd->bhqd", phi_q, kv)
        den = torch.einsum("bhqf,bhf->bhq", phi_q, z)[..., None] + 1e-6
        o = num / den
        return (lambda x, *d: x.permute(*d))(o, 0, 2, 1, 3).reshape(B, S, D) @ wo

    def _B_ref(x, w1, b1, w2):
        h = torch.einsum("bsd,df->bsf", x, w1) + b1
        sp = torch.log1p(torch.exp(-torch.abs(h))) + torch.where(h > 0, h, torch.zeros_like(h))
        act = h * torch.tanh(sp)
        return torch.einsum("bsf,fd->bsd", act, w2)

    x = A_x
    xn = _layernorm(x, axis=-1)
    s = _A_ref(xn, A_wqkv, A_w_phi, A_wo)
    g = _silu(_B_ref(xn, B_w1, B_b1, B_w2))
    return x + s * g
```

```python
import re, copy

TRANS = ("v_exp_f32", "v_log_f32", "v_rcp_f32", "v_rsq_f32", "v_sqrt_f32", "v_sin_f32", "v_cos_f32")

def _regs(tok):
    tok = tok.strip()
    neg = tok.lstrip("-")
    m = re.fullmatch(r"abs\((.*)\)", neg)
    if m: neg = m.group(1)
    neg = neg.strip("|")
    m = re.fullmatch(r"([vsa])(\d+)", neg)
    if m: return m.group(1), [int(m.group(2))]
    m = re.fullmatch(r"([vsa])\[(\d+):(\d+)\]", neg)
    if m: return m.group(1), list(range(int(m.group(2)), int(m.group(3)) + 1))
    if neg == "vcc": return "s", [1000, 1001]
    if neg == "exec": return "s", [1002, 1003]
    if neg == "m0": return "s", [1004]
    return None

def _split(ops):
    out, depth, cur = [], 0, ""
    for ch in ops:
        if ch in "[(": depth += 1
        if ch in "])": depth -= 1
        if ch == "," and depth == 0:
            out.append(cur.strip()); cur = ""
        else: cur += ch
    if cur.strip(): out.append(cur.strip())
    return out

class I:
    def __init__(self, text, tag=None, cost=None):
        self.text = text.strip(); self.tag = tag
        t = self.text.split(";")[0].strip()
        parts = t.split(None, 1)
        self.op = parts[0]
        ops = _split(parts[1]) if len(parts) > 1 else []
        self.mods = ""
        if ops:
            last = ops[-1].split(None, 1)
            ops[-1] = last[0]
            self.mods = last[1] if len(last) > 1 else ""
        self.ops = ops
        op = self.op
        self.vd, self.vs, self.sd, self.ss = [], [], [], []
        self.A = self.B = self.C = []
        def add(tok, dst):
            r = _regs(tok)
            if not r: return
            k, idx = r
            assert k != "a", "no agprs"
            (self.vd if dst else self.vs).extend(idx) if k == "v" else (self.sd if dst else self.ss).extend(idx)
        self.kind = "other"
        if op.startswith("v_mfma"):
            self.kind = "mfma"; self.passes = 8 if "32x32x16" in op else 4
            add(ops[0], True)
            for o in ops[1:]: add(o, False)
            f = lambda o: (_regs(o) or ("v", []))[1]
            self.A, self.B, self.C = f(ops[1]), f(ops[2]), f(ops[3])
        elif op.startswith("v_"):
            self.kind = "valu"
            add(ops[0], True)
            for o in ops[1:]: add(o, False)
            if op.startswith("v_permlane"): add(ops[0], False); add(ops[1], True)
            if op.startswith(("v_fmac", "v_dot2c", "v_writelane")): add(ops[0], False)
            if op.startswith(("v_add_co", "v_addc_co")): add(ops[1], True)
        elif op.startswith("ds_read"):
            self.kind = "dsr"; add(ops[0], True); add(ops[1], False)
        elif op.startswith("ds_"):
            self.kind = "dsw"
            for o in ops: add(o, False)
        elif op.startswith(("buffer_load", "global_load")):
            if re.search(r"\blds\b", self.mods):
                self.kind = "dma"
                for o in ops: add(o, False)
                self.ss.append(1004)
            else:
                self.kind = "vld"; add(ops[0], True)
                for o in ops[1:]: add(o, False)
                if "d16" in op: add(ops[0], False)
        elif op.startswith(("buffer_store", "global_store", "buffer_atomic", "global_atomic")):
            self.kind = "vst"
            for o in ops: add(o, False)
            data = ops[0] if op.startswith("buffer") else ops[1]
            self.data = _regs(data)[1]
        elif op.startswith("s_"):
            self.kind = "salu"
            if op in ("s_waitcnt", "s_barrier", "s_nop", "s_endpgm", "s_sleep", "s_setprio") or op.startswith(("s_branch", "s_cbranch")):
                pass
            elif op.startswith("s_cmp"):
                for o in ops: add(o, False)
            else:
                add(ops[0], True)
                for o in ops[1:]: add(o, False)
        self.trans = op.replace("_e32", "").replace("_e64", "") in TRANS
        self.dot = op.startswith("v_dot")
        if cost is None:
            if self.kind == "valu":
                if self.trans or op.startswith("v_permlane"): cost = 8
                elif op.startswith(("v_fma_f32", "v_mul_f32", "v_add_f32", "v_sub_f32", "v_mov", "v_and_b32", "v_or_b32", "v_xor", "v_add_u32", "v_lshrrev", "v_fmac", "v_fmaak", "v_fmamk")) and not self.ss: cost = 2.3
                else: cost = 4.3
            elif self.kind == "mfma": cost = 8
            else: cost = 2
        self.cost = cost
    def states(self):
        if self.op == "s_nop": return int(self.ops[0], 0) + 1
        return 1

class Wait:
    def __init__(self, vm=None, lgkm=None): self.vm = vm; self.lgkm = lgkm; self.cost = 1; self.kind = "wait"

class Raw:
    def __init__(self, text): self.text = text; self.cost = 0; self.kind = "raw"

class State:
    def __init__(self):
        self.vm = []
        self.lg = []
        self.hist = []
        self.done_tags = set()
    def clone(self):
        s = State(); s.vm = list(self.vm); s.lg = list(self.lg); s.hist = list(self.hist); s.done_tags = set(self.done_tags); return s

def _need(prev, cur):
    n = 0
    inter = lambda a, b: bool(set(a) & set(b))
    isvalu = lambda x: x.kind == "valu"
    mem = cur.kind in ("dsr", "dsw", "vld", "vst", "dma")
    if prev.kind == "valu":
        if cur.kind == "mfma" and inter(prev.vd, cur.vs): n = max(n, 3 if prev.dot else 2)
        if prev.trans and isvalu(cur) and inter(prev.vd, cur.vs) and not cur.trans: n = max(n, 1)
        if prev.trans and cur.kind in ("mfma",) and inter(prev.vd, cur.vs): n = max(n, 2)
        if cur.op.startswith("v_permlane") and inter(prev.vd, cur.vs): n = max(n, 2)
        if "dpp" in cur.op and inter(prev.vd, cur.vs): n = max(n, 2)
        if cur.op.startswith(("v_readlane", "v_readfirstlane")) and inter(prev.vd, cur.vs): n = max(n, 1)
        if prev.sd:
            if isvalu(cur) and (inter(prev.sd, cur.ss) or (cur.op.startswith("v_cndmask") and inter(prev.sd, [1000]))): n = max(n, 2)
            if mem and inter(prev.sd, cur.ss): n = max(n, 5)
            if cur.kind == "salu" and inter(prev.sd, cur.ss): n = max(n, 2)
        if prev.dot:
            if cur.op == prev.op:
                srcab = []
                for o in cur.ops[1:3]:
                    r = _regs(o)
                    if r and r[0] == "v": srcab += r[1]
                if inter(prev.vd, srcab): n = max(n, 3)
            elif inter(prev.vd, cur.vs + cur.vd): n = max(n, 3)
    if prev.kind == "mfma":
        big = {8: 12, 4: 8}[prev.passes]
        if cur.kind == "mfma":
            if inter(prev.vd, cur.A + cur.B): n = max(n, big)
            if inter(prev.vd, cur.C) and not (cur.C == prev.vd and cur.passes == prev.passes): n = max(n, big - 2)
            if inter(prev.vd, cur.vd) and not (cur.C == prev.vd): n = max(n, big - 2)
        elif isvalu(cur) or mem:
            if inter(prev.vd, cur.vs + cur.vd): n = max(n, big)
            if inter(prev.C, cur.vd): n = max(n, {8: 7, 4: 3}[prev.passes])
    if prev.kind == "salu" and 1004 in prev.sd and cur.kind == "dma": n = max(n, 1)
    if prev.kind == "vst" and len(prev.data) >= 3 and inter(prev.data, cur.vd): n = max(n, 2)
    if prev.kind == "dsw" and inter(prev.vs, cur.vd) and cur.kind in ("valu", "mfma"): n = max(n, 1)
    return n

def process(items, st):
    out = []
    def push(ins):
        out.append("    " + ins.text)
        st.hist.append(ins)
        if len(st.hist) > 24: st.hist.pop(0)
    def waitcnt(vm=None, lg=None):
        parts = []
        if vm is not None and vm < len(st.vm):
            vmn = min(vm, 63); parts.append(f"vmcnt({vmn})")
            for x in st.vm[:len(st.vm) - vmn]:
                if x.tag: st.done_tags.add(x.tag)
            st.vm = st.vm[len(st.vm) - vmn:]
        if lg is not None and lg < len(st.lg):
            lgn = min(lg, 15); parts.append(f"lgkmcnt({lgn})")
            for x in st.lg[:len(st.lg) - lgn]:
                if x.tag: st.done_tags.add(x.tag)
            st.lg = st.lg[len(st.lg) - lgn:]
        if parts: push(I("s_waitcnt " + " ".join(parts)))
    def after(lst, tag):
        if tag == "all": return 0
        idx = [k for k, x in enumerate(lst) if x.tag == tag]
        if not idx:
            assert tag in st.done_tags, f"unknown tag {tag}"
            return None
        return len(lst) - 1 - idx[-1]
    for it in items:
        if isinstance(it, Raw):
            out.append(it.text); continue
        if isinstance(it, Wait):
            waitcnt(after(st.vm, it.vm) if it.vm else None, after(st.lg, it.lgkm) if it.lgkm else None)
            continue
        ins = it
        touched = set(ins.vs) | set(ins.vd)
        vm = lg = None
        for k, x in enumerate(st.vm):
            if x.kind == "vld" and touched & set(x.vd):
                if ins.kind == "vld" and "d16" in ins.op and not (set(x.vd) & (set(ins.vs) - set(ins.vd))): continue
                vm = len(st.vm) - 1 - k
        for k, x in enumerate(st.lg):
            if x.kind == "dsr" and touched & set(x.vd): lg = len(st.lg) - 1 - k
        waitcnt(vm, lg)
        dist = 0; pad = 0
        for prev in reversed(st.hist):
            pad = max(pad, _need(prev, ins) - dist)
            dist += prev.states()
            if dist >= 20: break
        while pad > 0:
            n = min(pad, 16); push(I(f"s_nop {n-1}")); pad -= n
        push(ins)
        if ins.op == "s_waitcnt":
            m = re.search(r"vmcnt\((\d+)\)", ins.text)
            if m:
                n = int(m.group(1))
                if n < len(st.vm):
                    for x in st.vm[:len(st.vm) - n]:
                        if x.tag: st.done_tags.add(x.tag)
                    st.vm = st.vm[len(st.vm) - n:]
            m = re.search(r"lgkmcnt\((\d+)\)", ins.text)
            if m:
                n = int(m.group(1))
                if n < len(st.lg):
                    for x in st.lg[:len(st.lg) - n]:
                        if x.tag: st.done_tags.add(x.tag)
                    st.lg = st.lg[len(st.lg) - n:]
        if ins.kind in ("vld", "vst", "dma"): st.vm.append(ins)
        if ins.kind in ("dsr", "dsw"): st.lg.append(ins)
    return out

def merge(main, side, lead=0):
    pos = [k for k, x in enumerate(main) if getattr(x, "kind", "") == "mfma" and x.passes == 8][lead:]
    if not side: return list(main)
    if not pos: return list(main) + list(side)
    total = sum(x.cost for x in side)
    out = []; si = 0; acc = 0.0; g = 0
    for k, x in enumerate(main):
        out.append(x)
        if g < len(pos) and k == pos[g]:
            g += 1
            target = total * g / len(pos)
            while si < len(side) and (acc + side[si].cost / 2 <= target or g == len(pos)):
                acc += side[si].cost; out.append(side[si]); si += 1
    assert si == len(side)
    return out

def split_cost(lst, fracs):
    total = sum(x.cost for x in lst); s = sum(fracs)
    parts = []; k = 0; acc = 0.0; cum = 0.0
    for j, f in enumerate(fracs):
        cum += f / s * total
        p = []
        while k < len(lst) and (acc + lst[k].cost / 2 <= cum or j == len(fracs) - 1):
            acc += lst[k].cost; p.append(lst[k]); k += 1
        parts.append(p)
    return parts

def vr(a, n=1):
    return f"v{a}" if n == 1 else f"v[{a}:{a+n-1}]"
```

```python
import sys, math
from asmlib import *

NAME = "recurrent_scan__linear_kernel_hedgehog__dense_activation_mish__prompt"
LOG2E = 1.4426950408889634
def f2u(x):
    import struct
    return struct.unpack("<I", struct.pack("<f", x))[0]
T_BASE = 0
T_BYTES = 64 * 144 * 1024
KVP = T_BYTES
ZP = KVP + 8 * 16 * 8192
WS_USED = ZP + 8 * 16 * 512
SLOT = 16384
MISC = 9 * SLOT
CSX, STX, RST, ZF, WPH, IDN, ZX = MISC, MISC + 1024, MISC + 5120, MISC + 5632, MISC + 6144, MISC + 10240, MISC + 12288
KVF = STX
RED = 2 * SLOT
XF, WF, ACC = 128, 96, [64, 80]
CS, SEL, BEXT, WA = 60, 56, 52, 48
VX0, VX1, VWA, VWB, VH, VST, C1, CSW, CSR = 44, 45, 46, 47, 43, 42, 41, 40, 39
B1 = 35
MLO, LANE16, VZ = 32, 33, 34
TMP, TR, SC = 16, 0, 8
XA, STAT = 80, 88
OPT = dict(rot=1, sc1st=1)

class AddrGroup:
    def __init__(self, regs, bias=0): self.regs = regs; self.bias = bias
    def reach(self, lo, hi):
        out = []
        if lo < self.bias or hi - self.bias > 65535:
            d = lo - self.bias
            for r in self.regs:
                out.append(I(f"v_add_u32 v{r}, {d & 0xffffffff:#x}, v{r}"))
            self.bias = lo
        return out
    def off(self, a):
        o = a - self.bias
        assert 0 <= o <= 65535, (a, self.bias)
        return o

def srd(s, lo, hi, nbytes):
    return [I(f"s_mov_b32 s{s}, s{lo}"), I(f"s_mov_b32 s{s+1}, s{hi}"), I(f"s_mov_b32 s{s+2}, {nbytes:#x}"), I(f"s_mov_b32 s{s+3}, 0x20000")]

def dma_x(pos, half, slot, tag):
    o = [I(f"s_add_u32 m0, s41, {slot*SLOT}")]
    if half: o.append(I(f"s_add_u32 s56, s{44+pos}, 128")); so = "s56"
    else: so = f"s{44+pos}"
    o += [I(f"buffer_load_dwordx4 v{VX0}, s[20:23], {so} offen lds"),
          I(f"buffer_load_dwordx4 v{VX1}, s[20:23], {so} offen offset:1024 lds", tag=tag)]
    return o
def dma_w(sc, pos, slot, tag):
    return [I(f"s_add_u32 m0, s41, {slot*SLOT}"), I(f"s_add_u32 s56, s{48+pos}, s{52+sc}"),
            I(f"buffer_load_dwordx4 v{VWA}, s[24:27], s56 offen lds"),
            I(f"buffer_load_dwordx4 v{VWB}, s[24:27], s56 offen offset:1024 lds", tag=tag)]
def dma_h(pos, base, tag):
    return [I(f"s_add_u32 m0, s42, {base + pos*8192}"), I(f"s_add_u32 s56, s{48+pos}, s55"),
            I(f"buffer_load_dwordx4 v{VH}, s[24:27], s56 offen lds", tag=tag)]

WSLOT = {0: 2, 1: 5, 2: 8, 3: 2, 4: 3, 5: 4, 6: 5, 7: 6, 8: 7, 9: 8, 10: 0, 11: 1}
XSLOT = {0: 0, 1: 3, 2: 6, 3: 0}
HBASE = 2 * SLOT
def dma_step(s):
    o = []
    if s < 4:
        o += dma_x(s, 0, XSLOT[s], None) + dma_w(0, s, WSLOT[s], None) + dma_x(s, 1, XSLOT[s] + 1, f"st{s}")
    else:
        o += dma_w(s // 4, s % 4, WSLOT[s], f"st{s}")
    return o

def k1_prologue():
    o = []
    e = lambda t, **k: o.append(I(t, **k))
    e("s_cmp_ge_u32 s2, 256"); e("s_cbranch_scc1 L_k1_end")
    e("s_load_dwordx4 s[4:7], s[0:1], 0"); e("s_load_dwordx2 s[8:9], s[0:1], 16")
    e("s_load_dwordx4 s[12:15], s[0:1], 40"); e("s_load_dwordx4 s[16:19], s[0:1], 72")
    e("v_lshrrev_b32 v1, 6, v0"); e("v_and_b32 v2, 63, v0")
    e("s_and_b32 s58, s2, 7"); e("s_lshr_b32 s59, s2, 3")
    e("v_readfirstlane_b32 s36, v1")
    e("s_getpc_b64 s[60:61]")
    e(f"v_lshlrev_b32 v{LANE16}, 4, v2")
    e("s_lshl_b32 s62, s59, 10")
    e(f"v_add_u32 v3, s62, v{LANE16}")
    e("s_and_b32 s39, s58, 1"); e("s_lshl_b32 s39, s39, 3"); e("s_and_b32 s63, s59, 7"); e("s_add_u32 s39, s39, s63")
    e("s_cmp_lg_u32 s36, 0"); e("s_cbranch_scc1 L_k1_nopf")
    e(f"global_load_dwordx4 v[{TMP}:{TMP+3}], v3, s[60:61]")
    o.append(Raw("L_k1_nopf:"))
    e("s_lshr_b32 s64, s59, 3")
    e("s_and_b32 s40, s58, 6"); e("s_and_b32 s65, s64, 1"); e("s_add_u32 s40, s40, s65")
    e("s_and_b32 s37, s36, 3"); e("s_lshr_b32 s38, s36, 2")
    e("s_lshl_b32 s41, s36, 11"); e("s_lshl_b32 s42, s36, 10")
    e("s_movk_i32 s66, 3072"); e("s_cmp_ge_u32 s64, 2"); e("s_cselect_b32 s66, 3584, s66")
    e("v_lshrrev_b32 v4, 3, v2"); e("v_lshl_add_u32 v4, v1, 4, v4")
    e("v_and_b32 v5, 7, v2"); e("v_lshrrev_b32 v6, 4, v2")
    e("v_xor_b32 v7, v5, v6"); e("v_lshlrev_b32 v7, 4, v7")
    e(f"v_lshl_add_u32 v{VX0}, v4, 10, v7")
    e(f"v_xor_b32 v{VX1}, 64, v{VX0}"); e(f"v_add_u32 v{VX1}, {8192-1024}, v{VX1}")
    e("v_and_b32 v6, 1, v6"); e("v_lshlrev_b32 v6, 2, v6"); e("v_xor_b32 v7, v5, v6"); e("v_lshlrev_b32 v7, 4, v7")
    e(f"v_mad_u32_u24 v{VWA}, v4, s66, v7")
    e("s_lshl_b32 s67, s66, 3"); e("s_sub_u32 s67, s67, 1024")
    e(f"v_add_u32 v{VWB}, s67, v{VWA}")
    if OPT["rot"]:
        e("s_add_u32 s68, s63, s64")
    else:
        e("s_mov_b32 s68, 0")
    e("s_lshl_b32 s69, s39, 17"); e("s_lshl_b32 s70, s66, 7")
    for q in range(4):
        e(f"s_add_u32 s71, s68, {q}"); e("s_and_b32 s71, s71, 3")
        e(f"s_mul_i32 s{48+q}, s71, s70")
        e("s_lshl_b32 s71, s71, 8"); e(f"s_add_u32 s{44+q}, s69, s71")
    e("s_waitcnt lgkmcnt(0)")
    o += srd(20, 4, 5, 2048 * 1024)
    o += srd(28, 18, 19, WS_USED)
    e("s_cmp_ge_u32 s64, 2"); e("s_cbranch_scc1 L_k1_mlp")
    return o

def k1_lane_setup():
    o = []
    e = lambda t, **k: o.append(I(t, **k))
    e("v_and_b32 v3, 31, v2"); e("v_lshrrev_b32 v4, 5, v2")
    e("v_bfe_u32 v5, v2, 2, 2"); e("v_and_b32 v6, 3, v2"); e("v_bfe_u32 v7, v2, 4, 1")
    e("s_lshl_b32 s71, s37, 5"); e("v_add_u32 v8, s71, v3")
    e("v_bfe_u32 v9, v8, 1, 3"); e("v_xor_b32 v9, v9, v4"); e("v_lshlrev_b32 v9, 4, v9")
    e("v_lshl_add_u32 v9, v8, 7, v9")
    e("s_lshl_b32 s72, s38, 1"); e("s_xor_b32 s72, s72, s37")
    e("s_and_b32 s73, s72, 1"); e("s_lshl_b32 s73, s73, 6")
    e("s_lshr_b32 s74, s72, 1"); e("s_lshl_b32 s74, s74, 14"); e("s_or_b32 s73, s73, s74")
    e(f"v_xor_b32 v{XA}, s73, v9")
    for t in range(1, 8):
        e(f"v_xor_b32 v{XA+t}, {((t&3)<<5) | ((t>>2)<<14):#x}, v{XA}")
    e("v_lshl_add_u32 v10, v4, 3, v5")
    e("v_lshlrev_b32 v11, 5, v7"); e("v_lshl_add_u32 v11, v6, 3, v11")
    e("v_lshrrev_b32 v12, 1, v5"); e("v_xor_b32 v12, s38, v12"); e("v_lshl_add_u32 v12, v12, 6, v11")
    e("v_lshl_add_u32 v12, v10, 7, v12")
    e("s_lshl_b32 s74, s72, 12")
    e(f"v_add_u32 v{WA}, s74, v12")
    for tau in range(1, 4): e(f"v_xor_b32 v{WA+tau}, {tau<<12:#x}, v{WA}")
    e(f"v_lshl_add_u32 v{VZ}, v10, 6, v11"); e("s_lshl_b32 s74, s72, 11"); e(f"v_add_u32 v{VZ}, s74, v{VZ}")
    e("v_bfe_u32 v13, v2, 2, 1"); e("v_xor_b32 v13, v13, v7"); e("v_add_u32 v13, -1, v13")
    e(f"v_and_b32 v{SEL}, 0x3f803f80, v13")
    for k in range(1, 4): e(f"v_mov_b32 v{SEL+k}, v{SEL}")
    e(f"v_add_u32 v{MLO}, -1, v7")
    e("s_lshl_b32 s74, s38, 9"); e(f"s_add_u32 s74, s74, {CSX}")
    e(f"v_lshl_add_u32 v{CSR}, v3, 4, s74"); e("s_lshl_b32 s75, s37, 2"); e(f"v_add_u32 v{CSW}, s75, v{CSR}")
    e(f"s_mul_i32 s74, s37, {144*1024}"); e("s_lshl_b32 s75, s38, 11"); e("s_add_u32 s74, s74, s75")
    e(f"v_add_u32 v{VST}, s74, v{LANE16}")
    e(f"s_mul_i32 s57, s39, {4*144*1024}")
    e(f"v_lshlrev_b32 v{BEXT+2}, 5, v8"); e(f"v_add_u32 v{BEXT+2}, {STX}, v{BEXT+2}")
    e("s_lshl_b32 s74, s38, 4"); e(f"v_lshl_add_u32 v{BEXT+3}, v4, 3, s74"); e(f"v_add_u32 v{BEXT+3}, v{BEXT+3}, v{BEXT+2}")
    e(f"v_mov_b32 v{BEXT}, 0x3f803f80")
    e(f"v_add_u32 v{BEXT+1}, -1, v4")
    e(f"v_lshlrev_b32 v{C1}, 2, v8"); e(f"v_add_u32 v{C1}, {RST}, v{C1}")
    for k in range(4): e(f"v_mov_b32 v{STAT+k}, 0")
    return o

def wread(wa, base, t, half=False):
    f = WF + 4 * t
    if half: a0 = base + (t & 1) * 1024; du = 256
    else: a0 = base + (t & 1) * 2048; du = 512
    return [I(f"ds_read_b64_tr_b16 v[{f}:{f+1}], v{WA + (t>>1)} offset:{wa.off(a0)}"),
            I(f"ds_read_b64_tr_b16 v[{f+2}:{f+3}], v{WA + (t>>1)} offset:{wa.off(a0 + du)}")]
def mm(acc, q, t, first, swapped=True):
    w = vr(WF + 4 * t, 4); x = vr(XF + (q * 8 + t) * 4, 4)
    a, b = (w, x) if swapped else (x, w)
    return I(f"v_mfma_f32_32x32x16_bf16 {vr(acc,16)}, {a}, {b}, {'0' if first else vr(acc,16)}")
def csmm(t, first):
    return I(f"v_mfma_f32_16x16x32_bf16 {vr(CS,4)}, {vr(SEL,4)}, {vr(WF+4*t,4)}, {'0' if first else vr(CS,4)}")

def stats_side(q):
    o = []
    for t in range(4):
        for k in range(4):
            r = XF + (q * 8 + t) * 4 + k
            o.append(I(f"v_dot2_f32_bf16 v{STAT + (k&1)*2}, v{r}, v{BEXT}, v{STAT + (k&1)*2}"))
            o.append(I(f"v_dot2_f32_bf16 v{STAT + 1 + (k&1)*2}, v{r}, v{r}, v{STAT + 1 + (k&1)*2}"))
    return o
def stats_write():
    return [I(f"v_add_f32 v{STAT}, v{STAT}, v{STAT+2}"), I(f"v_add_f32 v{STAT+1}, v{STAT+1}, v{STAT+3}"),
            I(f"ds_write_b64 v{BEXT+3}, v[{STAT}:{STAT+1}]")]
def stats_finish(att):
    o = []; e = lambda t, **k: o.append(I(t, **k))
    T = TMP
    e(f"ds_read_b128 v[{T}:{T+3}], v{BEXT+2}"); e(f"ds_read_b128 v[{T+4}:{T+7}], v{BEXT+2} offset:16")
    e(f"v_add_f32 v{T}, v{T}, v{T+2}"); e(f"v_add_f32 v{T+1}, v{T+1}, v{T+3}")
    e(f"v_add_f32 v{T+4}, v{T+4}, v{T+6}"); e(f"v_add_f32 v{T+5}, v{T+5}, v{T+7}")
    e(f"v_add_f32 v{T}, v{T}, v{T+4}"); e(f"v_add_f32 v{T+1}, v{T+1}, v{T+5}")
    e(f"v_mul_f32 v{T}, {f2u(-1.0/512):#x}, v{T}")
    e(f"v_mul_f32 v{T+2}, v{T}, v{T}")
    e(f"v_mul_f32 v{T+1}, {f2u(1.0/512):#x}, v{T+1}")
    e(f"v_sub_f32 v{T+1}, v{T+1}, v{T+2}"); e(f"v_max_f32 v{T+1}, 0, v{T+1}")
    e(f"v_add_f32 v{T+1}, {f2u(1e-5):#x}, v{T+1}")
    e(f"v_rsq_f32 v{T+2}, v{T+1}")
    e(f"v_cvt_pk_bf16_f32 v{T+4}, v{T}, v{T}")
    e(f"v_mul_f32 v{T+3}, v{T+1}, v{T+2}")
    if att: e(f"ds_write_b32 v{C1}, v{T+2}")
    e(f"v_and_b32 v{T+5}, 0xffff0000, v{T+4}"); e(f"v_sub_f32 v{T+5}, v{T}, v{T+5}")
    e(f"v_cvt_pk_bf16_f32 v{T+6}, v{T+5}, v{T+3}")
    e(f"v_and_b32 v{T+7}, 0xffff0000, v{T+6}"); e(f"v_sub_f32 v{T+7}, v{T+3}, v{T+7}")
    e(f"v_cvt_pk_bf16_f32 v{T+7}, v{T+7}, 0")
    e(f"v_mul_f32 v{C1}, {f2u(LOG2E):#x}, v{T+2}")
    e(f"v_and_b32 v{BEXT}, v{T+4}, v{BEXT+1}"); e(f"v_and_b32 v{BEXT+2}, v{T+7}, v{BEXT+1}")
    e(f"v_and_b32 v{BEXT+1}, v{T+6}, v{BEXT+1}"); e(f"v_mov_b32 v{BEXT+3}, 0")
    return o
def aext(b1reg, off=0):
    o = []; e = lambda t, **k: o.append(I(t, **k))
    S = SC
    e(f"ds_read_b128 v[{S}:{S+3}], v{CSR} offset:{off}")
    e(f"v_add_f32 v{S}, v{S}, v{S+1}"); e(f"v_add_f32 v{S+2}, v{S+2}, v{S+3}"); e(f"v_add_f32 v{S}, v{S}, v{S+2}")
    e(f"v_cvt_pk_bf16_f32 v{S+1}, v{S}, v{S}")
    if b1reg is not None:
        e(f"v_lshlrev_b32 v{S+2}, 16, v{b1reg}"); e(f"v_mov_b32 v{TR+2}, v{b1reg}")
    else:
        e(f"v_mov_b32 v{TR+2}, 0")
    e(f"v_and_b32 v{S+1}, 0xffff0000, v{S+1}"); e(f"v_sub_f32 v{S+1}, v{S}, v{S+1}")
    e(f"v_cvt_pk_bf16_f32 v{TR+1}, v{S}, {'v%d' % (S+2) if b1reg is not None else '0'}")
    e(f"v_cvt_pk_bf16_f32 v{TR}, v{S}, v{S+1}")
    e(f"v_mov_b32 v{TR+3}, 0")
    return o
def extmm(acc, swapped=True):
    a, b = (vr(TR, 4), vr(BEXT, 4)) if swapped else (vr(BEXT, 4), vr(TR, 4))
    return I(f"v_mfma_f32_32x32x16_bf16 {vr(acc,16)}, {a}, {b}, {vr(acc,16)}")
SC1 = lambda: " sc1" if OPT["sc1st"] else ""
def mish_epi(acc, soff_setup, soff, vst=VST):
    o = []; e = lambda t, **k: o.append(I(t, **k))
    o += soff_setup
    for hf in range(2):
        A = acc + 8 * hf; T = TMP + 8 * hf
        for r in range(8): e(f"v_mul_f32 v{A+r}, v{A+r}, v{C1}")
        for r in range(8): e(f"v_exp_f32 v{T+r}, v{A+r}")
        for r in range(8): e(f"v_add_f32 v{T+r}, 1.0, v{T+r}")
        for r in range(8): e(f"v_fma_f32 v{T+r}, v{T+r}, v{T+r}, 1.0")
        for r in range(8): e(f"v_rcp_f32 v{T+r}, v{T+r}")
        for r in range(8): e(f"v_fma_f32 v{T+r}, v{T+r}, -2.0, 1.0")
        for r in range(8): e(f"v_mul_f32 v{A+r}, v{A+r}, v{T+r}")
        for k in range(4): e(f"v_cvt_pk_bf16_f32 v{T+k}, v{A+2*k}, v{A+2*k+1}")
        e(f"buffer_store_dwordx4 v[{T}:{T+3}], v{vst}, s[28:31], {soff} offen offset:{1024*hf}")
    return o

def step_main(s, wa, xa, prev, cur, pre_ext=None, ext=None):
    o = []
    if cur:
        base = WSLOT[s] * SLOT
        o += wa.reach(base, base + 4095)
        if s < 4: o += xa.reach(XSLOT[s] * SLOT, XSLOT[s] * SLOT)
        for t in range(4):
            o += wread(wa, base, t)
            if s < 4: o.append(I(f"ds_read_b128 {vr(XF + (s*8+t)*4, 4)}, v{XA+t} offset:{xa.off(XSLOT[s]*SLOT)}"))
    if pre_ext: o += pre_ext
    if prev:
        for t in range(4, 8): o.append(mm(prev[0], prev[1], t, False, prev[2]))
    if ext: o.append(ext)
    if cur:
        for t in range(4, 8):
            o += wread(wa, base, t)
            if s < 4: o.append(I(f"ds_read_b128 {vr(XF + (s*8+t)*4, 4)}, v{XA+t} offset:{xa.off(XSLOT[s]*SLOT)}"))
        for t in range(4):
            o.append(mm(cur[0], cur[1], t, cur[3] and t == 0, cur[2]))
            if t < 2: o.append(csmm(t, cur[3] and t == 0))
    return o
def cs_write(off=0): return [I(f"ds_write_b32 v{CSW}, v{CS} offset:{off}")]
def bar(tag):
    return [Wait(vm=tag, lgkm="all"), I("s_barrier")]

ISSUE = {0: [2], 1: [3], 2: [4, 5, 6], 3: [7, 8, 9], 4: [10, 11]}

def k1_mlp():
    o = []; e = lambda t, **k: o.append(I(t, **k))
    o += srd(24, 12, 13, 512 * 3584)
    e("s_mul_i32 s52, s40, 448"); e("s_and_b32 s71, s40, 1"); e("s_lshl_b32 s72, s71, 6")
    e("s_cmp_eq_u32 s71, 0"); e("s_cselect_b32 s55, 384, 0"); e("s_add_u32 s55, s55, s52")
    e("s_add_u32 s52, s52, s72"); e("s_add_u32 s53, s52, 128"); e("s_add_u32 s54, s52, 256")
    o += dma_step(0) + dma_step(1)
    o += k1_lane_setup()
    e("v_lshrrev_b32 v13, 2, v2"); e("v_lshl_add_u32 v13, v1, 4, v13"); e("v_lshlrev_b32 v14, 4, v6")
    e(f"v_mad_u32_u24 v{VH}, v13, s66, v14")
    o += srd(32, 14, 15, 3584)
    e("v_lshlrev_b32 v13, 1, v3"); e("s_lshl_b32 s71, s38, 6"); e("v_add_u32 v14, s71, v13")
    for c in range(3): e(f"buffer_load_ushort v{B1+c}, v14, s[32:35], s{52+c} offen")
    e(f"buffer_load_ushort v{B1+3}, v13, s[32:35], s55 offen")
    wa = AddrGroup([WA + k for k in range(4)]); xa = AddrGroup([XA + k for k in range(8)])
    def tsoff(sreg):
        return [I(f"s_lshl_b32 s76, s{sreg}, 5"), I("s_add_u32 s76, s76, s57")]
    epi = None
    for s in range(12):
        c, q = s // 4, s % 4
        o += bar(f"st{s}")
        prev = None if s == 0 else (ACC[((s-1)//4) & 1], (s-1) % 4, True)
        cur = (ACC[c & 1], q, True, q == 0)
        pre = ext = None; side = []; lead = 0
        if s >= 4 and q == 0:
            pre = (stats_finish(False) if s == 4 else []) + aext(B1 + c - 1)
            ext = extmm(ACC[(c-1) & 1])
            epi = split_cost(mish_epi(ACC[(c-1) & 1], tsoff(52 + c - 1), "s76"), [3, 8, 8, 8])
            lead = 6
        if s < 4: side = stats_side(s); lead = 4 if s else 0
        else: side = epi[q]
        m = step_main(s, wa, xa, prev, cur, pre, ext)
        o += merge(m, side, lead)
        if s == 3: o += stats_write()
        if q == 3: o += cs_write()
        for d in ISSUE.get(s, []): o += dma_step(d)
        if s == 5:
            for p in range(4): o += dma_h(p, HBASE, "half" if p == 3 else None)
    o += bar("half")
    pre = aext(B1 + 2)
    tailB = step_main(12, wa, xa, (ACC[0], 3, True), None, pre, extmm(ACC[0])) + mish_epi(ACC[0], tsoff(54), "s76")
    a = []
    for k in range(4): a.append(I(f"v_xor_b32 v{WA+k}, {k<<11:#x}, v{VZ}"))
    wh = AddrGroup([WA + k for k in range(4)])
    epi = split_cost(mish_epi(ACC[0], tsoff(54), "s76"), [3, 8, 8, 8])
    for q in range(4):
        m = []
        base = HBASE + q * 8192
        for t in range(4): m += wread(wh, base, t, True)
        if q == 0: m += aext(B1 + 2)
        for t in range(4, 8): m.append(mm(ACC[0] if q == 0 else ACC[1], 3 if q == 0 else q - 1, t, False))
        if q == 0: m.append(extmm(ACC[0]))
        for t in range(4, 8): m += wread(wh, base, t, True)
        for t in range(4):
            m.append(mm(ACC[1], q, t, q == 0 and t == 0))
            if t < 2: m.append(csmm(t, q == 0 and t == 0))
        a += merge(m, epi[q], 6 if q == 0 else 0)
    a += cs_write(ZX - CSX)
    for t in range(4, 8): a.append(mm(ACC[1], 3, t, False))
    a += [Wait(lgkm="all"), I("s_barrier")]
    a += aext(B1 + 3, ZX - CSX) + [extmm(ACC[1])] + mish_epi(ACC[1], tsoff(55), "s76")
    return o, a, tailB

def swap_reduce(a, b, t, op):
    return [I(f"v_permlane32_swap_b32 v{a}, v{b}"), I(f"{op} v{a}, v{a}, v{b}"), I(f"v_mov_b32 v{t}, v{a}"), I(f"v_permlane32_swap_b32 v{a}, v{t}")]

def feat_epi(acc, cadr):
    o = []; e = lambda t, **k: o.append(I(t, **k))
    A = acc; T = TMP; S = SC
    e(f"ds_read_b128 v[{TR+4}:{TR+7}], v{cadr} offset:1024")
    for k in range(8): e(f"v_cvt_pk_bf16_f32 v{T+k}, v{A+2*k}, v{A+2*k+1}")
    e(f"ds_read_b128 v[{TR}:{TR+3}], v{cadr}")
    e(f"v_mfma_f32_32x32x16_bf16 {vr(A,16)}, {vr(TR+4,4)}, {vr(T+4,4)}, 0")
    e(f"v_mfma_f32_32x32x16_bf16 {vr(A,16)}, {vr(TR,4)}, {vr(T,4)}, {vr(A,16)}")
    for hd in range(2):
        P = A + 8 * hd; mx, nm = S + 2 * hd, S + 2 * hd + 1
        e(f"v_max3_f32 v{mx}, v{P}, v{P+1}, v{P+2}"); e(f"v_max3_f32 v{nm}, -v{P}, -v{P+1}, -v{P+2}")
        e(f"v_max3_f32 v{mx}, v{mx}, v{P+3}, v{P+4}"); e(f"v_max3_f32 v{nm}, v{nm}, -v{P+3}, -v{P+4}")
        e(f"v_max3_f32 v{mx}, v{mx}, v{P+5}, v{P+6}"); e(f"v_max3_f32 v{nm}, v{nm}, -v{P+5}, -v{P+6}")
        e(f"v_max_f32 v{mx}, v{mx}, v{P+7}"); e(f"v_max_f32_e64 v{nm}, v{nm}, -v{P+7}")
    r0 = swap_reduce(S, S + 1, S + 1, "v_max_f32"); r1 = swap_reduce(S + 2, S + 3, S + 3, "v_max_f32")
    for x, y in zip(r0, r1): o += [x, y]
    for k in range(4): e(f"v_mul_f32_e64 v{S+k}, -v{S+k}, v{C1}")
    for hd in range(2):
        P = A + 8 * hd; E = T + 8; bp, bn = S + 2 * hd, S + 2 * hd + 1; sp, sn = S + 4, S + 5
        for r in range(8): e(f"v_fma_f32 v{E+r}, v{P+r}, v{C1}, v{bp}")
        for r in range(8): e(f"v_fma_f32 v{P+r}, -v{P+r}, v{C1}, v{bn}")
        for r in range(8): e(f"v_exp_f32 v{E+r}, v{E+r}")
        for r in range(8): e(f"v_exp_f32 v{P+r}, v{P+r}")
        e(f"v_add_f32 v{sp}, v{E}, v{E+1}"); e(f"v_add_f32 v{S+6}, v{E+2}, v{E+3}")
        e(f"v_add_f32 v{sn}, v{P}, v{P+1}"); e(f"v_add_f32 v{S+7}, v{P+2}, v{P+3}")
        for r in (4, 6):
            e(f"v_add_f32 v{sp}, v{sp}, v{E+r}"); e(f"v_add_f32 v{S+6}, v{S+6}, v{E+r+1}")
            e(f"v_add_f32 v{sn}, v{sn}, v{P+r}"); e(f"v_add_f32 v{S+7}, v{S+7}, v{P+r+1}")
        e(f"v_add_f32 v{sp}, v{sp}, v{S+6}"); e(f"v_add_f32 v{sn}, v{sn}, v{S+7}")
        e(f"v_permlane32_swap_b32 v{sp}, v{sn}"); e(f"v_add_f32 v{sp}, v{sp}, v{sn}"); e(f"v_rcp_f32 v{sp}, v{sp}")
        e(f"v_mov_b32 v{sn}, v{sp}"); e(f"v_permlane32_swap_b32 v{sp}, v{sn}")
        for r in range(8): e(f"v_mul_f32 v{E+r}, v{E+r}, v{sp}")
        for r in range(8): e(f"v_mul_f32 v{P+r}, v{P+r}, v{sn}")
        D = T + 8 * hd
        for k in range(4): e(f"v_cvt_pk_bf16_f32 v{D+k}, v{E+2*k}, v{E+2*k+1}")
        for k in range(4): e(f"v_cvt_pk_bf16_f32 v{D+4+k}, v{P+2*k}, v{P+2*k+1}")
    return o

def k_transpose(acc, idadr, zadr):
    o = []; e = lambda t, **k: o.append(I(t, **k))
    A = acc; T = TMP; S = SC
    e(f"ds_read_b128 v[{TR}:{TR+3}], v{idadr} offset:{IDN - MISC}"); e(f"ds_read_b128 v[{TR+4}:{TR+7}], v{idadr} offset:{IDN - MISC + 1024}")
    for hd in range(2):
        D = T + 8 * hd
        e(f"v_mfma_f32_32x32x16_bf16 {vr(A,16)}, {vr(D,4)}, {vr(TR,4)}, 0")
        e(f"v_mfma_f32_32x32x16_bf16 {vr(A,16)}, {vr(D+4,4)}, {vr(TR+4,4)}, {vr(A,16)}")
        for k in range(8): e(f"v_cvt_pk_bf16_f32 v{D+k}, v{A+2*k}, v{A+2*k+1}")
        for k in range(4): e(f"v_add_f32 v{S+k}, v{A+k}, v{A+4+k}")
        for k in range(4): e(f"v_add_f32 v{S+4+k}, v{A+8+k}, v{A+12+k}")
        for k in range(4): e(f"v_add_f32 v{S+k}, v{S+k}, v{S+4+k}")
        e(f"v_add_f32 v{S}, v{S}, v{S+1}"); e(f"v_add_f32 v{S+2}, v{S+2}, v{S+3}"); e(f"v_add_f32 v{S}, v{S}, v{S+2}")
        e(f"ds_write_b32 v{zadr}, v{S} offset:{1024*hd}")
    return o

def k1_att():
    o = []; e = lambda t, **k: o.append(I(t, **k))
    o += srd(24, 6, 7, 512 * 3072)
    e("s_lshl_b32 s54, s40, 7"); e("s_add_u32 s52, s54, 1024"); e("s_add_u32 s53, s54, 2048")
    o += dma_step(0) + dma_step(1)
    o += k1_lane_setup()
    CADR, IDADR, ZADR, RSR = B1, B1 + 1, B1 + 2, B1 + 3
    o += srd(32, 8, 9, 32 * 512)
    e("v_and_b32 v13, 15, v2"); e("v_lshlrev_b32 v13, 1, v13"); e("v_lshl_add_u32 v13, v7, 9, v13"); e("v_lshl_add_u32 v13, v4, 7, v13")
    e("s_lshl_b32 s71, s40, 11"); e("s_lshl_b32 s72, s38, 10"); e("s_add_u32 s71, s71, s72")
    W = TMP + 4; W2 = STAT + 4
    for j in range(8):
        d = (j >> 2) * 8 + (j & 3)
        e(f"buffer_load_ushort v{(W2 if j & 1 else W) + (j>>1)}, v13, s[32:35], s71 offen offset:{d*32}")
    e(f"v_add_u32 v{IDADR}, {MISC}, v{LANE16}")
    e("s_lshl_b32 s72, s38, 11"); e(f"s_add_u32 s72, s72, {WPH}"); e(f"v_add_u32 v{CADR}, s72, v{LANE16}")
    e("s_lshl_b32 s72, s38, 11"); e("s_lshl_b32 s73, s37, 3"); e("s_add_u32 s72, s72, s73"); e(f"s_add_u32 s72, s72, {ZX}")
    e(f"v_lshl_add_u32 v{ZADR}, v3, 5, s72"); e(f"v_lshl_add_u32 v{ZADR}, v4, 2, v{ZADR}")
    e("s_lshl_b32 s72, s37, 7"); e(f"s_add_u32 s72, s72, {RST}"); e(f"v_lshl_add_u32 v{RSR}, v4, 4, s72")
    J = TMP + 8
    e("v_bfe_u32 v8, v2, 2, 1"); e("v_xor_b32 v8, v8, v4"); e("v_add_u32 v8, -1, v8")
    e("v_and_b32 v9, 1, v2"); e("v_lshlrev_b32 v9, 4, v9"); e("v_mov_b32 v10, 0x3f80"); e("v_lshlrev_b32 v9, v9, v10"); e("v_and_b32 v9, v9, v8")
    e("v_bfe_u32 v10, v2, 3, 1"); e("v_bfe_u32 v11, v2, 1, 1"); e("v_lshl_add_u32 v10, v10, 1, v11")
    for d in range(4):
        e(f"v_cmp_eq_u32 vcc, {d}, v10"); e(f"v_cndmask_b32 v{J+4+d}, 0, v9, vcc")
    for d in range(4): e(f"v_and_b32 v{J+d}, v{J+4+d}, v{MLO}")
    for d in range(4): e(f"v_xor_b32 v{J+4+d}, v{J+4+d}, v{J+d}")
    e(f"ds_write_b128 v{IDADR}, v[{J}:{J+3}] offset:{IDN-MISC}"); e(f"ds_write_b128 v{IDADR}, v[{J+4}:{J+7}] offset:{IDN-MISC+1024}")
    wphi_store = []
    for d in range(4): wphi_store.append(I(f"v_lshl_or_b32 v{W+d}, v{W2+d}, 16, v{W+d}"))
    for d in range(4): wphi_store.append(I(f"v_and_b32 v{TMP+d}, v{W+d}, v{MLO}"))
    for d in range(4): wphi_store.append(I(f"v_xor_b32 v{W+d}, v{W+d}, v{TMP+d}"))
    wphi_store += [I(f"ds_write_b128 v{CADR}, v[{TMP}:{TMP+3}]"), I(f"ds_write_b128 v{CADR}, v[{W}:{W+3}] offset:1024")]
    wa = AddrGroup([WA + k for k in range(4)]); xa = AddrGroup([XA + k for k in range(8)])
    SW = [True, False, True]
    V = ACC[1]
    vepi = []; ev = lambda t: vepi.append(I(t))
    for qd in range(4):
        R = TR + 4 * ((qd + 1) & 1)
        ev(f"ds_read_b128 v[{R}:{R+3}], v{RSR} offset:{qd*32}")
        for k in range(4): ev(f"v_mul_f32 v{V+4*qd+k}, v{V+4*qd+k}, v{R+k}")
    for k in range(8): ev(f"v_cvt_pk_bf16_f32 v{V+k}, v{V+2*k}, v{V+2*k+1}")
    for k in range(8): ev(f"v_and_b32 v{V+8+k}, v{V+k}, v{MLO}")
    for k in range(8): ev(f"v_xor_b32 v{V+k}, v{V+k}, v{V+8+k}")
    ev(f"v_mfma_f32_32x32x16_bf16 v[0:15], {vr(TMP,4)}, {vr(V+8,4)}, 0")
    ev(f"v_mfma_f32_32x32x16_bf16 v[0:15], {vr(TMP+4,4)}, {vr(V+12,4)}, v[0:15]")
    ev(f"v_mfma_f32_32x32x16_bf16 v[0:15], {vr(TMP+8,4)}, {vr(V,4)}, v[0:15]")
    ev(f"v_mfma_f32_32x32x16_bf16 v[0:15], {vr(TMP+12,4)}, {vr(V+4,4)}, v[0:15]")
    ev("s_lshl_b32 s72, s36, 12"); ev(f"s_add_u32 s72, s72, {RED}"); ev(f"v_add_u32 v{VH}, s72, v{LANE16}")
    kvw = [I(f"ds_write_b128 v{VH}, v[{4*k}:{4*k+3}] offset:{1024*k}") for k in range(4)]
    red = []; er = lambda t, **k: red.append(I(t, **k))
    er("s_lshl_b32 s72, s38, 14"); er("s_lshl_b32 s73, s37, 10"); er("s_add_u32 s72, s72, s73"); er(f"s_add_u32 s72, s72, {RED}")
    er(f"v_add_u32 v{VH}, s72, v{LANE16}")
    for k in range(4): er(f"ds_read_b128 v[{4*k}:{4*k+3}], v{VH} offset:{4096*k}")
    er("s_lshl_b32 s72, s38, 11"); er(f"s_add_u32 s72, s72, {ZX}"); er(f"v_lshl_add_u32 v{ZADR}, v{LANE16}, 1, s72")
    er(f"ds_read_b128 v[{V}:{V+3}], v{ZADR}"); er(f"ds_read_b128 v[{V+4}:{V+7}], v{ZADR} offset:16")
    for k in range(4): er(f"v_add_f32 v{k}, v{k}, v{4+k}")
    for k in range(4): er(f"v_add_f32 v{8+k}, v{8+k}, v{12+k}")
    for k in range(4): er(f"v_add_f32 v{k}, v{k}, v{8+k}")
    er("s_lshl_b32 s77, s40, 4"); er("s_add_u32 s78, s77, s39"); er("s_lshl_b32 s78, s78, 1"); er("s_add_u32 s78, s78, s38")
    er("s_lshl_b32 s79, s78, 12"); er("s_add_u32 s79, s79, s73"); er(f"s_add_u32 s79, s79, {KVP}")
    er(f"buffer_store_dwordx4 v[0:3], v{LANE16}, s[28:31], s79 offen sc1")
    for k in range(4): er(f"v_add_f32 v{V+k}, v{V+k}, v{V+4+k}")
    er(f"v_add_f32 v{V}, v{V}, v{V+1}"); er(f"v_add_f32 v{V+2}, v{V+2}, v{V+3}"); er(f"v_add_f32 v{V}, v{V}, v{V+2}")
    er("s_lshl_b32 s79, s78, 8"); er(f"s_add_u32 s79, s79, {ZP}"); er(f"v_lshrrev_b32 v{V+4}, 2, v{LANE16}")
    er(f"buffer_store_dword v{V}, v{V+4}, s[28:31], s79 offen sc1", tag="kvst")
    flag = [I("s_cmp_lg_u32 s36, 0"), I("s_cbranch_scc1 L_att_noflag"),
            I("s_add_u32 s79, s77, s39"), I(f"v_mov_b32 v{V+5}, s79"), I(f"v_mov_b32 v{V+6}, 1"),
            I(f"global_store_byte v{V+5}, v{V+6}, s[16:17] sc1"), Raw("L_att_noflag:")]
    epi = None
    for s in range(12):
        c, q = s // 4, s % 4
        o += bar("kvst" if s == 11 else f"st{s}")
        if s == 11: o += flag
        prev = None if s == 0 else (ACC[((s-1)//4) & 1], (s-1) % 4, SW[(s-1)//4])
        cur = (ACC[c & 1], q, SW[c], q == 0)
        pre = ext = None; side = []; lead = 0
        if s == 4:
            pre = stats_finish(True) + aext(None); ext = extmm(ACC[0]); lead = 6
            epi = split_cost(feat_epi(ACC[0], CADR) + k_transpose(ACC[0], IDADR, ZADR), [3, 8, 8, 8])
        if s == 8:
            pre = aext(None); ext = extmm(ACC[1], False); lead = 6
            epi = [vepi, red, [], []]
        if s < 4: side = stats_side(s) + (wphi_store if s == 2 else []); lead = 4 if s else 0
        else: side = epi[q]
        o += merge(step_main(s, wa, xa, prev, cur, pre, ext), side, lead)
        if s == 3: o += stats_write()
        if s == 8: o += kvw
        if q == 3: o += cs_write()
        for d in ISSUE.get(s, []): o += dma_step(d)
    o += [Wait(lgkm="all"), I("s_barrier")]
    o += step_main(12, wa, xa, (ACC[0], 3, True), None, aext(None), extmm(ACC[0]))
    o += feat_epi(ACC[0], CADR)
    e(f"v_mov_b32 v{V+5}, s77"); e("s_mov_b32 s80, 0"); e("s_waitcnt vmcnt(0)")
    o.append(Raw(f"""L_att_poll:
    global_load_dwordx4 v[{V}:{V+3}], v{V+5}, s[16:17] sc1
    s_add_u32 s80, s80, 1
    s_waitcnt vmcnt(0)
    v_and_b32 v{V}, v{V}, v{V+1}
    v_and_b32 v{V+2}, v{V+2}, v{V+3}
    v_and_b32 v{V}, v{V}, v{V+2}
    s_nop 1
    v_readfirstlane_b32 s81, v{V}
    s_nop 3
    s_cmp_eq_u32 s81, 0x01010101
    s_cbranch_scc1 L_att_go
    s_sleep 2
    s_cmp_lt_u32 s80, 0x40000
    s_cbranch_scc1 L_att_poll
L_att_go:"""))
    e("s_lshl_b32 s79, s77, 13"); e("s_lshl_b32 s72, s38, 12"); e("s_add_u32 s79, s79, s72"); e("s_add_u32 s79, s79, s73"); e(f"s_add_u32 s79, s79, {KVP}")
    for k in range(16):
        e(f"buffer_load_dwordx4 {vr(XF+4*k,4)}, v{LANE16}, s[28:31], s79 offen sc1")
        if k < 15: e("s_add_u32 s79, s79, 8192")
    e("s_lshl_b32 s79, s77, 9"); e("s_lshl_b32 s72, s38, 8"); e("s_add_u32 s79, s79, s72"); e(f"s_add_u32 s79, s79, {ZP}")
    Z = XF + 64
    for k in range(16):
        if k == 8: e("s_add_u32 s79, s79, 4096")
        e(f"buffer_load_dword v{Z+k}, v{V+4}, s[28:31], s79 offen offset:{(k&7)*512} sc1")
    L = V + 8
    e(f"v_lshrrev_b32 v{L}, 4, v{LANE16}")
    e("s_lshl_b32 s72, s38, 11"); e(f"s_add_u32 s72, s72, {KVF}")
    e(f"v_lshl_add_u32 v{L+1}, v{LANE16}, 1, s72")
    e("s_lshl_b32 s74, s37, 3"); e(f"v_add_u32 v{L+2}, s74, v{L+1}")
    e("s_lshl_b32 s72, s38, 7"); e(f"s_add_u32 s72, s72, {ZF}")
    e(f"v_lshrrev_b32 v{L+3}, 5, v{L}"); e(f"v_lshl_add_u32 v{L+4}, v{L+3}, 6, s72")
    e(f"v_bfe_u32 v{L+5}, v{L}, 2, 1"); e(f"v_lshl_add_u32 v{L+4}, v{L+5}, 5, v{L+4}")
    e(f"v_and_b32 v{L+5}, 24, v{L}"); e(f"v_add_u32 v{L+4}, v{L+4}, v{L+5}")
    e(f"v_and_b32 v{L+5}, 3, v{L}"); e(f"v_lshl_add_u32 v{L+4}, v{L+5}, 1, v{L+4}")
    e(f"v_lshl_add_u32 v{L+5}, v{L+3}, 5, s72"); e(f"v_add_u32 v{L+6}, 64, v{L+5}")
    e(f"v_bfi_b32 v{L+5}, v{MLO}, v{L+1}, v{L+5}")
    e(f"v_bfi_b32 v{L+6}, v{MLO}, v{L+6}, v{L+1}")
    for st_ in (8, 4, 2, 1):
        for k in range(st_):
            for r in range(4): e(f"v_add_f32 v{XF+4*k+r}, v{XF+4*k+r}, v{XF+4*(k+st_)+r}")
    e(f"v_cvt_pk_bf16_f32 v{XF}, v{XF}, v{XF+1}"); e(f"v_cvt_pk_bf16_f32 v{XF+1}, v{XF+2}, v{XF+3}")
    e(f"ds_write_b64 v{L+2}, v[{XF}:{XF+1}]")
    for st_ in (8, 4, 2, 1):
        for k in range(st_): e(f"v_add_f32 v{Z+k}, v{Z+k}, v{Z+k+st_}")
    e(f"v_cvt_pk_bf16_f32 v{Z}, v{Z}, v{Z}"); e(f"ds_write_b16 v{L+4}, v{Z}")
    o += [Wait(lgkm="all"), I("s_barrier")]
    e(f"ds_read_b128 v[0:3], v{L+5}"); e(f"ds_read_b128 v[4:7], v{L+5} offset:16")
    e(f"ds_read_b128 v[8:11], v{L+6}"); e(f"ds_read_b128 v[12:15], v{L+6} offset:16")
    OA, OB = XF, XF + 16
    e(f"v_mfma_f32_32x32x16_bf16 {vr(OA,16)}, v[0:3], {vr(TMP,4)}, 0")
    e(f"v_mfma_f32_32x32x16_bf16 {vr(OA,16)}, v[4:7], {vr(TMP+4,4)}, {vr(OA,16)}")
    e(f"v_mfma_f32_32x32x16_bf16 {vr(OB,16)}, v[8:11], {vr(TMP+8,4)}, 0")
    e(f"v_mfma_f32_32x32x16_bf16 {vr(OB,16)}, v[12:15], {vr(TMP+12,4)}, {vr(OB,16)}")
    e("s_lshl_b32 s76, s40, 12"); e("s_add_u32 s76, s76, s57"); e(f"s_add_u32 s76, s76, {112*1024}")
    for hd, (num, den) in enumerate(((OA, OA + 8), (OB + 8, OB))):
        e(f"v_add_f32 v{den}, {f2u(1e-6):#x}, v{den}"); e(f"v_rcp_f32 v{den}, v{den}")
        for r in range(8): e(f"v_mul_f32 v{num+r}, v{num+r}, v{den}")
        for k in range(4): e(f"v_cvt_pk_bf16_f32 v{num+k}, v{num+2*k}, v{num+2*k+1}")
        e(f"buffer_store_dwordx4 {vr(num,4)}, v{VST}, s[28:31], s76 offen offset:{1024*hd}")
    return o

def k1_text():
    st = State()
    lines = process(k1_prologue(), st)
    st_m = st.clone()
    lines += process(k1_att(), st) + ["    s_endpgm", "L_k1_mlp:"]
    o, a, tb = k1_mlp()
    lines += process(o + [I("s_cmp_lg_u32 s38, 0"), I("s_cbranch_scc1 L_mlp_B")], st_m)
    st_b = st_m.clone()
    lines += process(a, st_m) + ["    s_endpgm", "L_mlp_B:"]
    lines += process(tb, st_b) + ["L_k1_end:", "    s_endpgm"]
    return "\n".join(lines)

def k2_text():
    o = []; e = lambda t, **k: o.append(I(t, **k))
    S2 = 32768
    AO, AS = 64, 80
    TFR, WFR = 32, 48
    VT, VWa, VWb, RT, RW, XR, VO = 10, 11, 12, 13, 14, 16, 15
    e("s_cmp_ge_u32 s2, 256"); e("s_cbranch_scc1 L_k2_end")
    e("s_load_dwordx2 s[4:5], s[0:1], 0"); e("s_load_dwordx2 s[6:7], s[0:1], 24"); e("s_load_dwordx4 s[8:11], s[0:1], 56"); e("s_load_dwordx2 s[12:13], s[0:1], 80")
    e("v_lshrrev_b32 v1, 6, v0"); e("v_and_b32 v2, 63, v0")
    e("s_and_b32 s58, s2, 7"); e("s_lshr_b32 s59, s2, 3")
    e("v_readfirstlane_b32 s36, v1")
    e("s_and_b32 s60, s59, 3"); e("s_lshl_b32 s39, s58, 2"); e("s_add_u32 s39, s39, s60")
    e("s_lshr_b32 s40, s59, 2")
    e("s_lshl_b32 s41, s36, 11")
    e("v_lshlrev_b32 v3, 4, v2")
    e("s_lshr_b32 s37, s36, 2"); e(f"s_mul_i32 s61, s37, {144*1024}"); e("s_and_b32 s62, s36, 3"); e("s_lshl_b32 s62, s62, 11"); e("s_add_u32 s61, s61, s62")
    e(f"v_add_u32 v{VT}, s61, v3")
    e("v_lshrrev_b32 v4, 3, v2"); e("v_lshl_add_u32 v4, v1, 4, v4"); e("v_and_b32 v5, 7, v2")
    e("v_bfe_u32 v6, v2, 4, 1"); e("v_lshlrev_b32 v7, 2, v6"); e("v_xor_b32 v7, v5, v7"); e("v_lshlrev_b32 v7, 4, v7")
    e(f"v_lshl_add_u32 v{VWa}, v4, 10, v7"); e(f"v_add_u32 v{VWb}, {8192-1024}, v{VWa}")
    e(f"s_mul_i32 s44, s39, {2*144*1024}")
    e("s_lshl_b32 s45, s40, 7")
    if OPT["rot"]:
        e("s_lshl_b32 s46, s60, 1"); e("s_add_u32 s46, s46, s40")
    else: e("s_mov_b32 s46, 0")
    e("s_waitcnt lgkmcnt(0)")
    o += srd(20, 12, 13, WS_USED) + srd(24, 8, 9, 1792 * 1024) + srd(28, 6, 7, 512 * 1024)
    def dma(s):
        r = []; slot = (s % 4) * S2
        if s < 14:
            r += [I("s_lshl_b32 s47, s46, 13"), I("s_add_u32 s47, s47, s44"), I("s_lshl_b32 s48, s46, 17"), I("s_add_u32 s48, s48, s45"),
                  I("s_add_u32 s46, s46, 1"), I("s_cmp_eq_u32 s46, 14"), I("s_cselect_b32 s46, 0, s46")]
            wsrd = "s[24:27]"
        else:
            r += [I(f"s_add_u32 s47, s44, {s*8192}"), I(f"s_add_u32 s48, s45, {(s-14)*131072}")]
            wsrd = "s[28:31]"
        r += [I(f"s_add_u32 m0, s41, {slot}"),
              I(f"buffer_load_dwordx4 v{VT}, s[20:23], s47 offen lds"), I(f"buffer_load_dwordx4 v{VT}, s[20:23], s47 offen offset:1024 lds"),
              I(f"s_add_u32 m0, s41, {slot + 16384}"),
              I(f"buffer_load_dwordx4 v{VWa}, {wsrd}, s48 offen lds"), I(f"buffer_load_dwordx4 v{VWb}, {wsrd}, s48 offen offset:1024 lds", tag=f"st{s}")]
        return r
    o += dma(0) + dma(1) + dma(2)
    e("s_and_b32 s38, s36, 1"); e("s_bfe_u32 s42, s36, 0x10001")
    e("s_lshl_b32 s61, s38, 13"); e("s_lshl_b32 s62, s37, 12"); e("s_add_u32 s61, s61, s62"); e(f"v_add_u32 v{RT}, s61, v3")
    e("v_lshrrev_b32 v4, 5, v2"); e("v_bfe_u32 v5, v2, 2, 2"); e("v_and_b32 v7, 3, v2")
    e("v_lshl_add_u32 v8, v4, 2, v5"); e("v_lshlrev_b32 v9, 5, v6"); e("v_lshl_add_u32 v9, v7, 3, v9")
    e("v_lshrrev_b32 v5, 1, v5"); e("v_xor_b32 v5, s42, v5"); e("v_lshl_add_u32 v9, v5, 6, v9"); e("v_lshl_add_u32 v9, v8, 7, v9")
    e("s_lshl_b32 s62, s37, 13"); e("s_add_u32 s62, s62, 16384"); e(f"v_add_u32 v{RW}, s62, v9")
    o += srd(32, 4, 5, 2048 * 1024) + srd(64, 10, 11, 2048 * 1024)
    e("v_and_b32 v5, 31, v2"); e("v_lshlrev_b32 v5, 10, v5")
    e("s_lshl_b32 s61, s39, 16"); e("s_lshl_b32 s62, s38, 15"); e("s_add_u32 s61, s61, s62"); e("s_add_u32 s61, s61, s45")
    e("s_lshl_b32 s62, s42, 6"); e("s_add_u32 s61, s61, s62"); e("s_lshl_b32 s62, s37, 5"); e("s_add_u32 s50, s61, s62")
    e("v_lshl_add_u32 v7, v4, 3, v5"); e(f"v_lshl_add_u32 v{VO}, v4, 4, v5")
    e(f"buffer_load_dwordx2 v[{XR}:{XR+1}], v7, s[32:35], s50 offen"); e(f"buffer_load_dwordx2 v[{XR+2}:{XR+3}], v7, s[32:35], s50 offen offset:16")
    rt = AddrGroup([RT]); rw = AddrGroup([RW])
    for s in range(18):
        o += bar(f"st{s}")
        base = (s % 4) * S2
        o += rt.reach(base, base + 3072) + rw.reach(base, base + 8191)
        acc = AO if s < 14 else AS
        for t in range(4):
            e(f"ds_read_b128 {vr(TFR+4*t,4)}, v{RT} offset:{rt.off(base + t*1024)}")
            e(f"ds_read_b64_tr_b16 v[{WFR+4*t}:{WFR+4*t+1}], v{RW} offset:{rw.off(base + t*2048)}")
            e(f"ds_read_b64_tr_b16 v[{WFR+4*t+2}:{WFR+4*t+3}], v{RW} offset:{rw.off(base + t*2048 + 1024)}")
        for t in range(4):
            first = (s in (0, 14)) and t == 0
            e(f"v_mfma_f32_32x32x16_bf16 {vr(acc,16)}, {vr(WFR+4*t,4)}, {vr(TFR+4*t,4)}, {'0' if first else vr(acc,16)}")
        if s + 3 < 18: o += dma(s + 3)
    XB = 2 * S2
    e(f"s_lshl_b32 s61, s36, 12"); e(f"s_add_u32 s61, s61, {XB}"); e("v_add_u32 v4, s61, v3")
    e(f"s_xor_b32 s62, s36, 4"); e("s_lshl_b32 s62, s62, 12"); e(f"s_add_u32 s62, s62, {XB}"); e("v_add_u32 v5, s62, v3")
    e("s_cmp_lg_u32 s37, 0"); e("s_cbranch_scc1 L_k2_hi")
    st = State(); lines = process(o, st)
    def tail(keep, send):
        t = []; e = lambda x, **k: t.append(I(x, **k))
        e(f"ds_write_b128 v4, {vr(AO+send,4)}"); e(f"ds_write_b128 v4, {vr(AO+send+4,4)} offset:1024")
        e(f"ds_write_b128 v4, {vr(AS+send,4)} offset:2048"); e(f"ds_write_b128 v4, {vr(AS+send+4,4)} offset:3072")
        t += [Wait(lgkm="all"), I("s_barrier")]
        R = 32
        for k in range(4): e(f"ds_read_b128 {vr(R+4*k,4)}, v5 offset:{1024*k}")
        G, S_, E = AO + keep, AS + keep, 48
        for r in range(8): e(f"v_add_f32 v{G+r}, v{G+r}, v{R+r}")
        for r in range(8): e(f"v_exp_f32_e64 v{E+r}, -v{G+r}")
        for r in range(8): e(f"v_add_f32 v{S_+r}, v{S_+r}, v{R+8+r}")
        for r in range(8): e(f"v_add_f32 v{E+r}, 1.0, v{E+r}")
        for r in range(8): e(f"v_rcp_f32 v{E+r}, v{E+r}")
        for r in range(8): e(f"v_mul_f32 v{S_+r}, v{S_+r}, v{G+r}")
        for k in range(4):
            e(f"v_lshlrev_b32 v{R+2*k}, 16, v{XR+k}"); e(f"v_and_b32 v{R+2*k+1}, 0xffff0000, v{XR+k}")
        for r in range(8): e(f"v_mul_f32 v{E+r}, {f2u(1/LOG2E):#x}, v{E+r}")
        for r in range(8): e(f"v_fma_f32 v{R+r}, v{S_+r}, v{E+r}, v{R+r}")
        for k in range(4): e(f"v_cvt_pk_bf16_f32 v{E+k}, v{R+2*k}, v{R+2*k+1}")
        e(f"v_permlane32_swap_b32 v{E}, v{E+2}"); e(f"v_permlane32_swap_b32 v{E+1}, v{E+3}")
        e(f"buffer_store_dwordx4 {vr(E,4)}, v{VO}, s[64:67], s50 offen")
        return t
    st2 = st.clone()
    lines += process(tail(0, 8), st) + ["    s_endpgm", "L_k2_hi:"] + process(tail(8, 0), st2) + ["L_k2_end:", "    s_endpgm"]
    return "\n".join(lines)

def kd(name, vgpr, sgpr):
    return f""".p2align 6
.amdhsa_kernel {name}
  .amdhsa_next_free_vgpr {vgpr}
  .amdhsa_next_free_sgpr {sgpr}
  .amdhsa_accum_offset {(vgpr+3)//4*4}
  .amdhsa_group_segment_fixed_size 0
  .amdhsa_kernarg_size 88
  .amdhsa_user_sgpr_count 2
  .amdhsa_user_sgpr_kernarg_segment_ptr 1
  .amdhsa_system_sgpr_workgroup_id_x 1
.end_amdhsa_kernel
"""
def fn(name, body):
    return f".globl {name}\n.p2align 8\n.type {name},@function\n{name}:\n{body}\n"

def main(path):
    s = "; hedgehog linear attention + mish MLP, generated by gen/gen.py\n"
    s += "; @launch kernel=hh_p1_kernel grid=(256,1,1) block=(512,1,1) lds=163840\n"
    s += "; @launch kernel=hh_p2_kernel grid=(256,1,1) block=(512,1,1) lds=131072\n"
    s += '.amdgcn_target "amdgcn-amd-amdhsa--gfx950"\n.text\n'
    s += fn("hh_p1_kernel", k1_text()) + fn("hh_p2_kernel", k2_text())
    s += ".fill 8192, 4, 0xbf800000\n"
    s += '.section .rodata,"a"\n' + kd("hh_p1_kernel", 256, 96) + kd("hh_p2_kernel", 96, 96)
    open(path, "w").write(s)
if __name__ == "__main__":
    for a in sys.argv[2:]:
        k, v = a.split("="); OPT[k] = int(v)
    main(sys.argv[1])
```

```python
import re, copy

TRANS = ("v_exp_f32", "v_log_f32", "v_rcp_f32", "v_rsq_f32", "v_sqrt_f32", "v_sin_f32", "v_cos_f32")

def _regs(tok):
    tok = tok.strip()
    neg = tok.lstrip("-")
    m = re.fullmatch(r"abs\((.*)\)", neg)
    if m: neg = m.group(1)
    neg = neg.strip("|")
    m = re.fullmatch(r"([vsa])(\d+)", neg)
    if m: return m.group(1), [int(m.group(2))]
    m = re.fullmatch(r"([vsa])\[(\d+):(\d+)\]", neg)
    if m: return m.group(1), list(range(int(m.group(2)), int(m.group(3)) + 1))
    if neg == "vcc": return "s", [1000, 1001]
    if neg == "exec": return "s", [1002, 1003]
    if neg == "m0": return "s", [1004]
    return None

def _split(ops):
    out, depth, cur = [], 0, ""
    for ch in ops:
        if ch in "[(": depth += 1
        if ch in "])": depth -= 1
        if ch == "," and depth == 0:
            out.append(cur.strip()); cur = ""
        else: cur += ch
    if cur.strip(): out.append(cur.strip())
    return out

class I:
    def __init__(self, text, tag=None, cost=None):
        self.text = text.strip(); self.tag = tag
        t = self.text.split(";")[0].strip()
        parts = t.split(None, 1)
        self.op = parts[0]
        ops = _split(parts[1]) if len(parts) > 1 else []
        self.mods = ""
        if ops:
            last = ops[-1].split(None, 1)
            ops[-1] = last[0]
            self.mods = last[1] if len(last) > 1 else ""
        self.ops = ops
        op = self.op
        self.vd, self.vs, self.sd, self.ss = [], [], [], []
        self.A = self.B = self.C = []
        def add(tok, dst):
            r = _regs(tok)
            if not r: return
            k, idx = r
            assert k != "a", "no agprs"
            (self.vd if dst else self.vs).extend(idx) if k == "v" else (self.sd if dst else self.ss).extend(idx)
        self.kind = "other"
        if op.startswith("v_mfma"):
            self.kind = "mfma"; self.passes = 8 if "32x32x16" in op else 4
            add(ops[0], True)
            for o in ops[1:]: add(o, False)
            f = lambda o: (_regs(o) or ("v", []))[1]
            self.A, self.B, self.C = f(ops[1]), f(ops[2]), f(ops[3])
        elif op.startswith("v_"):
            self.kind = "valu"
            add(ops[0], True)
            for o in ops[1:]: add(o, False)
            if op.startswith("v_permlane"): add(ops[0], False); add(ops[1], True)
            if op.startswith(("v_fmac", "v_dot2c", "v_writelane")): add(ops[0], False)
            if op.startswith(("v_add_co", "v_addc_co")): add(ops[1], True)
        elif op.startswith("ds_read"):
            self.kind = "dsr"; add(ops[0], True); add(ops[1], False)
        elif op.startswith("ds_"):
            self.kind = "dsw"
            for o in ops: add(o, False)
        elif op.startswith(("buffer_load", "global_load")):
            if re.search(r"\blds\b", self.mods):
                self.kind = "dma"
                for o in ops: add(o, False)
                self.ss.append(1004)
            else:
                self.kind = "vld"; add(ops[0], True)
                for o in ops[1:]: add(o, False)
                if "d16" in op: add(ops[0], False)
        elif op.startswith(("buffer_store", "global_store", "buffer_atomic", "global_atomic")):
            self.kind = "vst"
            for o in ops: add(o, False)
            data = ops[0] if op.startswith("buffer") else ops[1]
            self.data = _regs(data)[1]
        elif op.startswith("s_"):
            self.kind = "salu"
            if op in ("s_waitcnt", "s_barrier", "s_nop", "s_endpgm", "s_sleep", "s_setprio") or op.startswith(("s_branch", "s_cbranch")):
                pass
            elif op.startswith("s_cmp"):
                for o in ops: add(o, False)
            else:
                add(ops[0], True)
                for o in ops[1:]: add(o, False)
        self.trans = op.replace("_e32", "").replace("_e64", "") in TRANS
        self.dot = op.startswith("v_dot")
        if cost is None:
            if self.kind == "valu":
                if self.trans or op.startswith("v_permlane"): cost = 8
                elif op.startswith(("v_fma_f32", "v_mul_f32", "v_add_f32", "v_sub_f32", "v_mov", "v_and_b32", "v_or_b32", "v_xor", "v_add_u32", "v_lshrrev", "v_fmac", "v_fmaak", "v_fmamk")) and not self.ss: cost = 2.3
                else: cost = 4.3
            elif self.kind == "mfma": cost = 8
            else: cost = 2
        self.cost = cost
    zero = False
    def states(self):
        if self.zero: return 0
        if self.op == "s_nop": return int(self.ops[0], 0) + 1
        return 1

class Wait:
    def __init__(self, vm=None, lgkm=None): self.vm = vm; self.lgkm = lgkm; self.cost = 1; self.kind = "wait"

class WaitPeek:
    def __init__(self, vm): self.vm = vm; self.cost = 1; self.kind = "wait"

class Raw:
    def __init__(self, text): self.text = text; self.cost = 0; self.kind = "raw"

class Skip:
    def __init__(self, begin): self.begin = begin; self.cost = 0; self.kind = "skip"

class State:
    def __init__(self):
        self.vm = []
        self.lg = []
        self.hist = []
        self.done_tags = set()
    def clone(self):
        s = State(); s.vm = list(self.vm); s.lg = list(self.lg); s.hist = list(self.hist); s.done_tags = set(self.done_tags); return s

def _need(prev, cur):
    n = 0
    inter = lambda a, b: bool(set(a) & set(b))
    isvalu = lambda x: x.kind == "valu"
    mem = cur.kind in ("dsr", "dsw", "vld", "vst", "dma")
    if prev.kind == "valu":
        if cur.kind == "mfma" and inter(prev.vd, cur.vs): n = max(n, 3 if prev.dot else 2)
        if prev.trans and isvalu(cur) and inter(prev.vd, cur.vs) and not cur.trans: n = max(n, 1)
        if prev.trans and cur.kind in ("mfma",) and inter(prev.vd, cur.vs): n = max(n, 2)
        if cur.op.startswith("v_permlane") and inter(prev.vd, cur.vs): n = max(n, 2)
        if "dpp" in cur.op and inter(prev.vd, cur.vs): n = max(n, 2)
        if cur.op.startswith(("v_readlane", "v_readfirstlane")) and inter(prev.vd, cur.vs): n = max(n, 1)
        if prev.sd:
            if isvalu(cur) and (inter(prev.sd, cur.ss) or (cur.op.startswith("v_cndmask") and inter(prev.sd, [1000]))): n = max(n, 2)
            if mem and inter(prev.sd, cur.ss): n = max(n, 5)
            if cur.kind == "salu" and inter(prev.sd, cur.ss): n = max(n, 2)
        if prev.dot:
            if cur.op == prev.op:
                srcab = []
                for o in cur.ops[1:3]:
                    r = _regs(o)
                    if r and r[0] == "v": srcab += r[1]
                if inter(prev.vd, srcab): n = max(n, 3)
            elif inter(prev.vd, cur.vs + cur.vd): n = max(n, 3)
    if prev.kind == "mfma":
        big = {8: 12, 4: 8}[prev.passes]
        if cur.kind == "mfma":
            if inter(prev.vd, cur.A + cur.B): n = max(n, big)
            if inter(prev.vd, cur.C) and not (cur.C == prev.vd and cur.passes == prev.passes): n = max(n, big - 2)
            if inter(prev.vd, cur.vd) and not (cur.C == prev.vd): n = max(n, big - 2)
        elif isvalu(cur) or mem:
            if inter(prev.vd, cur.vs + cur.vd): n = max(n, big)
            if inter(prev.C, cur.vd): n = max(n, {8: 7, 4: 3}[prev.passes])
    if prev.kind == "salu" and 1004 in prev.sd and cur.kind == "dma": n = max(n, 1)
    if prev.kind == "vst" and len(prev.data) >= 3 and inter(prev.data, cur.vd): n = max(n, 2)
    if prev.kind == "dsw" and inter(prev.vs, cur.vd) and cur.kind in ("valu", "mfma"): n = max(n, 1)
    return n

def process(items, st):
    out = []
    def push(ins):
        out.append("    " + ins.text)
        st.hist.append(ins)
        while len(st.hist) > 64: st.hist.pop(0)
    def waitcnt(vm=None, lg=None):
        parts = []
        if vm is not None and vm < len(st.vm):
            vmn = min(vm, 63); parts.append(f"vmcnt({vmn})")
            for x in st.vm[:len(st.vm) - vmn]:
                if x.tag: st.done_tags.add(x.tag)
            st.vm = st.vm[len(st.vm) - vmn:]
        if lg is not None and lg < len(st.lg):
            lgn = min(lg, 15); parts.append(f"lgkmcnt({lgn})")
            for x in st.lg[:len(st.lg) - lgn]:
                if x.tag: st.done_tags.add(x.tag)
            st.lg = st.lg[len(st.lg) - lgn:]
        if parts: push(I("s_waitcnt " + " ".join(parts)))
    def after(lst, tag):
        if tag == "all": return 0
        idx = [k for k, x in enumerate(lst) if x.tag == tag]
        if not idx:
            assert tag in st.done_tags, f"unknown tag {tag}"
            return None
        return len(lst) - 1 - idx[-1]
    for it in items:
        if isinstance(it, Raw):
            out.append(it.text); continue
        if isinstance(it, Skip):
            if it.begin: st.snap = list(st.hist)
            else:
                reg = [copy.copy(x) for x in st.hist if not any(x is y for y in st.snap)]
                for x in reg: x.zero = True
                st.hist = st.snap + reg
            continue
        if isinstance(it, WaitPeek):
            n = after(st.vm, it.vm)
            if n is not None: out.append(f"    s_waitcnt vmcnt({min(n, 63)})")
            continue
        if isinstance(it, Wait):
            waitcnt(after(st.vm, it.vm) if it.vm else None, after(st.lg, it.lgkm) if it.lgkm else None)
            continue
        ins = it
        touched = set(ins.vs) | set(ins.vd)
        vm = lg = None
        for k, x in enumerate(st.vm):
            if x.kind == "vld" and touched & set(x.vd):
                if ins.kind == "vld" and "d16" in ins.op and not (set(x.vd) & (set(ins.vs) - set(ins.vd))): continue
                vm = len(st.vm) - 1 - k
        for k, x in enumerate(st.lg):
            if x.kind == "dsr" and touched & set(x.vd): lg = len(st.lg) - 1 - k
        waitcnt(vm, lg)
        dist = 0; pad = 0
        for prev in reversed(st.hist):
            pad = max(pad, _need(prev, ins) - dist)
            dist += prev.states()
            if dist >= 20: break
        while pad > 0:
            n = min(pad, 16); push(I(f"s_nop {n-1}")); pad -= n
        push(ins)
        if ins.op == "s_waitcnt":
            m = re.search(r"vmcnt\((\d+)\)", ins.text)
            if m:
                n = int(m.group(1))
                if n < len(st.vm):
                    for x in st.vm[:len(st.vm) - n]:
                        if x.tag: st.done_tags.add(x.tag)
                    st.vm = st.vm[len(st.vm) - n:]
            m = re.search(r"lgkmcnt\((\d+)\)", ins.text)
            if m:
                n = int(m.group(1))
                if n < len(st.lg):
                    for x in st.lg[:len(st.lg) - n]:
                        if x.tag: st.done_tags.add(x.tag)
                    st.lg = st.lg[len(st.lg) - n:]
        if ins.kind in ("vld", "vst", "dma"): st.vm.append(ins)
        if ins.kind in ("dsr", "dsw"): st.lg.append(ins)
    return out

def merge(main, side, lead=0):
    mp = [k for k, x in enumerate(main) if getattr(x, "kind", "") == "mfma" and x.passes == 8]
    pos = ([k - 1 for k in mp[1:]] + [len(main) - 1])[lead:] if mp else []
    if not side: return list(main)
    if not pos: return list(main) + list(side)
    total = sum(x.cost for x in side)
    out = []; si = 0; acc = 0.0; g = 0
    for k, x in enumerate(main):
        out.append(x)
        if g < len(pos) and k == pos[g]:
            g += 1
            target = total * g / len(pos)
            while si < len(side) and (acc + side[si].cost / 2 <= target or g == len(pos)):
                acc += side[si].cost; out.append(side[si]); si += 1
    assert si == len(side)
    return out

def split_cost(lst, fracs):
    total = sum(x.cost for x in lst); s = sum(fracs)
    parts = []; k = 0; acc = 0.0; cum = 0.0
    for j, f in enumerate(fracs):
        cum += f / s * total
        p = []
        while k < len(lst) and (acc + lst[k].cost / 2 <= cum or j == len(fracs) - 1):
            acc += lst[k].cost; p.append(lst[k]); k += 1
        parts.append(p)
    return parts

def vr(a, n=1):
    return f"v{a}" if n == 1 else f"v[{a}:{a+n-1}]"
```

```python
import sys, struct
from asmlib import *

NAME = "recurrent_scan__linear_kernel_hedgehog__dense_activation_mish__prompt"
LOG2E = 1.4426950408889634
f2u = lambda x: struct.unpack("<I", struct.pack("<f", x))[0]
OPT = dict(rot=1, map=1, stamp=0, smask=0, h1=0, kvf=10, f0=9, f1=13, tfirst=11, prio=0, nobar=0, rot2=1, cap1=4, cap2=6)
T_BYTES = 64 * 144 * 1024
KVP = T_BYTES
ZP = KVP + 8 * 16 * 8192
FLG = ZP + 8 * 16 * 512
WS_USED = FLG + 88 * 128
STAMP_BASE = 200 << 20
SLOT = 16384
MISC = 9 * SLOT
CSX, STX, RST, ZF, WPH, IDN, ZX = MISC, MISC + 1024, MISC + 5120, MISC + 5632, MISC + 6144, MISC + 10240, MISC + 12288
XF, WF, ACC = 128, 96, [64, 80]
CS, SEL, BEXT, WA = 60, 56, 52, 48
VX0, VX1, VWA, VWB, VH, VST, C1, CSW, CSR = 44, 45, 46, 47, 43, 42, 41, 40, 39
B1 = 35
MLO, LANE16, VZ = 32, 33, 34
TMP, TR, SC = 16, 0, 8
XA, STAT = 80, 88
FR = VWA
AO, AS, TFR, WFR = 128, 144, 160, 176
RT, RW, XR, VO = WA, WA + 1, 192, 196
BIG = 200
S_X, S_W, S_WS, S_AUX, S_W2, S_WO, S_OUT = 24, 28, 32, 36, 40, 44, 76
W_, RG, ROLE, I_, C_, W2048, W1024, TB = 48, 49, 50, 51, 52, 53, 54, 55
XO, WOF, COL, SO, STO = 56, 60, 64, 68, 69
T2B, W2B = 70, 73
OUTO, FROW = 80, 81
NONCE = 9
FOWN, FCOL = 16, 17
srdr = lambda s: f"s[{s}:{s+3}]"

class Stamper:
    def __init__(self): self.n = 0; self.k = 0
    def __call__(self, force=False):
        k = self.k; self.k += 1
        if not OPT["stamp"]: return []
        if not force and OPT["smask"] and not (OPT["smask"] >> k) & 1: return []
        n = self.n; self.n += 1
        assert n < 18, "too many stamps"
        return [Wait(lgkm="all"), I("s_memtime s[100:101]"), I("s_waitcnt lgkmcnt(0)"), I(f"s_mov_b32 s{82+n}, s100")]
    def dump(self):
        if not OPT["stamp"]: return []
        o = self(True) + [I("s_memrealtime s[100:101]"), I("s_waitcnt vmcnt(0) lgkmcnt(0)"), I("v_mov_b32 v1, 0")]
        for k in range(self.n): o.append(I(f"v_writelane_b32 v1, s{82+k}, {k}"))
        o.append(I("v_writelane_b32 v1, s100, 31"))
        o += [I("v_mbcnt_lo_u32_b32 v2, -1, 0"), I("v_mbcnt_hi_u32_b32 v2, -1, v2"), I("v_lshlrev_b32 v2, 2, v2"),
              I("s_lshl_b32 s100, s2, 3"), I(f"s_add_u32 s100, s100, s{W_}"), I("s_lshl_b32 s100, s100, 8"), I(f"s_add_u32 s100, s100, {STAMP_BASE}"),
              I("v_add_u32 v2, s100, v2"), I("global_store_dword v2, v1, s[22:23]")]
        return o
    def clone(self):
        c = Stamper(); c.n = self.n; c.k = self.k; return c
ST = Stamper()

class AddrGroup:
    def __init__(self, regs, bias=0): self.regs = regs; self.bias = bias
    def reach(self, lo, hi):
        out = []
        if lo < self.bias or hi - self.bias > 65535:
            nb = [c for c in (0, 65536, 98304) if lo >= c and hi - c <= 65535][0]
            d = nb - self.bias
            for r in self.regs: out.append(I(f"v_add_u32 v{r}, {d & 0xffffffff:#x}, v{r}"))
            self.bias = nb
        return out
    def off(self, a):
        o = a - self.bias
        assert 0 <= o <= 65535, (a, self.bias)
        return o

def srd(s, lo, nbytes):
    return [I(f"s_mov_b32 s{s}, s{lo}"), I(f"s_mov_b32 s{s+1}, s{lo+1}"), I(f"s_mov_b32 s{s+2}, {nbytes:#x}"), I(f"s_mov_b32 s{s+3}, 0x20000")]
def groups(ins):
    out, cur = [], []
    for x in ins:
        cur.append(x)
        if x.kind == "dma": out.append(cur); cur = []
    assert not cur
    return out
class Uncounted(I):
    def __init__(self, text):
        super().__init__(text); self.kind = "vst_u"

def dma_x(pos, half, slot, tag):
    o = [I(f"s_add_u32 m0, s{W2048}, {slot*SLOT}")]
    if half: o.append(I(f"s_add_u32 s{SO}, s{XO+pos}, 128")); so = f"s{SO}"
    else: so = f"s{XO+pos}"
    return o + [I(f"buffer_load_dwordx4 v{VX0}, {srdr(S_X)}, {so} offen lds"),
                I(f"buffer_load_dwordx4 v{VX1}, {srdr(S_X)}, {so} offen offset:1024 lds", tag=tag)]
def dma_w(sc, pos, slot, tag):
    return [I(f"s_add_u32 m0, s{W2048}, {slot*SLOT}"), I(f"s_add_u32 s{SO}, s{WOF+pos}, s{COL+sc}"),
            I(f"buffer_load_dwordx4 v{VWA}, {srdr(S_W)}, s{SO} offen lds"),
            I(f"buffer_load_dwordx4 v{VWB}, {srdr(S_W)}, s{SO} offen offset:1024 lds", tag=tag)]
def dma_h(hs, slot, tag):
    o = []
    for k in range(2):
        o += [I(f"s_add_u32 m0, s{W1024}, {slot*SLOT + k*8192}"), I(f"s_add_u32 s{SO}, s{WOF+2*hs+k}, s{COL+3}"),
              I(f"buffer_load_dwordx4 v{VH}, {srdr(S_W)}, s{SO} offen lds", tag=tag if k else None)]
    return o
def p2_feat(sg):
    if sg < 12: return 0, 64 * (sg // 4), sg % 4
    if sg < 14: return 1, 192 + 896 * (sg - 12), None
    return 2, 128 * (sg - 14), None
MROT = 4
def dma_t(sg, slot, tag):
    k, f, m = p2_feat(sg)
    o = [I(f"s_add_u32 m0, s{W2048}, {slot*SLOT}")]
    c = f * 64 + (112 * 1024 if sg >= 14 else 0)
    if m is not None:
        o += [I(f"s_lshl_b32 s{SO}, s{MROT+m}, 6"), I(f"s_add_u32 s{SO}, s{SO}, s{T2B+k}")]
        if c: o.append(I(f"s_add_u32 s{SO}, s{SO}, {c}"))
    else: o.append(I(f"s_add_u32 s{SO}, s{T2B+k}, {c}"))
    return o + [I(f"buffer_load_dwordx4 v{LANE16}, {srdr(S_WS)}, s{SO} offen sc1 lds"),
                I(f"buffer_load_dwordx4 v{LANE16}, {srdr(S_WS)}, s{SO} offen offset:1024 sc1 lds", tag=tag)]
def dma_w2(sg, slot, tag):
    k, f, m = p2_feat(sg)
    o = [I(f"s_add_u32 m0, s{W2048}, {slot*SLOT}")]
    if m is not None:
        o += [I(f"s_lshl_b32 s{SO}, s{MROT+m}, 10"), I(f"s_add_u32 s{SO}, s{SO}, s{W2B+k}")]
        if f: o.append(I(f"s_add_u32 s{SO}, s{SO}, {f*1024}"))
    else: o.append(I(f"s_add_u32 s{SO}, s{W2B+k}, {f*1024}"))
    sr = srdr(S_WO if sg >= 14 else S_W2)
    return o + [I(f"buffer_load_dwordx4 v{VX0}, {sr}, s{SO} offen lds"),
                I(f"buffer_load_dwordx4 v{VX1}, {sr}, s{SO} offen offset:1024 lds", tag=tag)]
XSLOT = {0: 0, 1: 3, 2: 6, 3: 0}
W0SLOT = {0: 2, 1: 5, 2: 8, 3: 2}
def dma_xstep(s):
    return dma_x(s, 0, XSLOT[s], None) + dma_w(0, s, W0SLOT[s], None) + dma_x(s, 1, XSLOT[s] + 1, f"st{s}")

def prologue():
    o = []; e = lambda t, **k: o.append(I(t, **k))
    t0, t1, t2, t3, t4, t5 = 70, 71, 72, 73, 74, 75
    XCD, IDX, LR, LC, STR = 76, 77, 78, 79, 69
    e("s_cmp_ge_u32 s2, 256"); e("s_cbranch_scc1 L_end")
    e("s_load_dwordx8 s[4:11], s[0:1], 0"); e("s_load_dwordx8 s[12:19], s[0:1], 40"); e("s_load_dwordx4 s[20:23], s[0:1], 72")
    e("v_lshrrev_b32 v1, 6, v0"); e("v_and_b32 v2, 63, v0")
    e(f"s_and_b32 s{XCD}, s2, 7"); e(f"s_lshr_b32 s{IDX}, s2, 3")
    e(f"v_readfirstlane_b32 s{W_}, v1")
    e(f"s_getpc_b64 s[{t0}:{t1}]")
    e(f"v_lshlrev_b32 v{LANE16}, 4, v2")
    e(f"s_mul_i32 s{t2}, s{IDX}, 1280")
    e(f"v_lshl_add_u32 v3, v0, 4, s{t2}")
    e(f"s_cmp_ge_u32 s{W_}, 2"); e("s_cbranch_scc1 L_nopf")
    e(f"global_load_dwordx4 v[{TMP}:{TMP+3}], v3, s[{t0}:{t1}]")
    o.append(Raw("L_nopf:"))
    if OPT["map"]:
        e(f"s_and_b32 s{LR}, s{IDX}, 3"); e(f"s_lshr_b32 s{LC}, s{IDX}, 2")
        e(f"s_and_b32 s{I_}, s{XCD}, 3"); e(f"s_lshl_b32 s{I_}, s{I_}, 2"); e(f"s_add_u32 s{I_}, s{I_}, s{LR}")
        e(f"s_and_b32 s{C_}, s{XCD}, 4"); e(f"s_and_b32 s{t2}, s{LC}, 3"); e(f"s_add_u32 s{C_}, s{C_}, s{t2}")
    else:
        e(f"s_and_b32 s{LR}, s{IDX}, 7"); e(f"s_lshr_b32 s{LC}, s{IDX}, 3")
        e(f"s_and_b32 s{I_}, s{XCD}, 1"); e(f"s_lshl_b32 s{I_}, s{I_}, 3"); e(f"s_add_u32 s{I_}, s{I_}, s{LR}")
        e(f"s_and_b32 s{C_}, s{XCD}, 6"); e(f"s_and_b32 s{t2}, s{LC}, 1"); e(f"s_add_u32 s{C_}, s{C_}, s{t2}")
    e(f"s_lshl_b32 s{W2048}, s{W_}, 11")
    e(f"s_movk_i32 s{STR}, 3072"); e(f"s_cmp_ge_u32 s{IDX}, 16"); e(f"s_cselect_b32 s{STR}, 3584, s{STR}")
    e("v_lshrrev_b32 v4, 3, v2"); e("v_lshl_add_u32 v4, v1, 4, v4")
    e("v_and_b32 v5, 7, v2"); e("v_lshrrev_b32 v6, 4, v2")
    e("v_xor_b32 v7, v5, v6"); e("v_lshlrev_b32 v7, 4, v7")
    e(f"v_lshl_add_u32 v{VX0}, v4, 10, v7")
    e(f"v_xor_b32 v{VX1}, 64, v{VX0}"); e(f"v_add_u32 v{VX1}, {8192-1024}, v{VX1}")
    e("v_and_b32 v6, 1, v6"); e("v_lshlrev_b32 v6, 2, v6"); e("v_xor_b32 v7, v5, v6"); e("v_lshlrev_b32 v7, 4, v7")
    e(f"v_mad_u32_u24 v{VWA}, v4, s{STR}, v7")
    e(f"s_lshl_b32 s{t2}, s{STR}, 3"); e(f"s_sub_u32 s{t2}, s{t2}, 1024")
    e(f"v_add_u32 v{VWB}, s{t2}, v{VWA}")
    if OPT["rot"]: e(f"s_add_u32 s{t3}, s{LR}, s{LC}")
    else: e(f"s_mov_b32 s{t3}, 0")
    e(f"s_lshl_b32 s{t4}, s{I_}, 17"); e(f"s_lshl_b32 s{t5}, s{STR}, 7")
    for q in range(4):
        e(f"s_add_u32 s{t2}, s{t3}, {q}"); e(f"s_and_b32 s{t2}, s{t2}, 3")
        e(f"s_mul_i32 s{WOF+q}, s{t2}, s{t5}")
        e(f"s_lshl_b32 s{t2}, s{t2}, 8"); e(f"s_add_u32 s{XO+q}, s{t4}, s{t2}")
    e(f"s_cmp_ge_u32 s{IDX}, 16"); e("s_cbranch_scc1 L_mlp")
    return o

def lane_setup():
    o = []; e = lambda t, **k: o.append(I(t, **k))
    a, b, c, d = 70, 71, 72, 73
    e(f"s_and_b32 s{RG}, s{W_}, 3"); e(f"s_lshr_b32 s{ROLE}, s{W_}, 2"); e(f"s_lshl_b32 s{W1024}, s{W_}, 10")
    e("v_and_b32 v3, 31, v2"); e("v_lshrrev_b32 v4, 5, v2")
    e("v_bfe_u32 v5, v2, 2, 2"); e("v_and_b32 v6, 3, v2"); e("v_bfe_u32 v7, v2, 4, 1")
    e(f"s_lshl_b32 s{a}, s{RG}, 5"); e(f"v_add_u32 v8, s{a}, v3")
    e("v_bfe_u32 v9, v8, 1, 3"); e("v_xor_b32 v9, v9, v4"); e("v_lshlrev_b32 v9, 4, v9")
    e("v_lshl_add_u32 v9, v8, 7, v9")
    e(f"s_lshl_b32 s{b}, s{ROLE}, 1"); e(f"s_xor_b32 s{b}, s{b}, s{RG}")
    e(f"s_and_b32 s{c}, s{b}, 1"); e(f"s_lshl_b32 s{c}, s{c}, 6")
    e(f"s_lshr_b32 s{d}, s{b}, 1"); e(f"s_lshl_b32 s{d}, s{d}, 14"); e(f"s_or_b32 s{c}, s{c}, s{d}")
    e(f"v_xor_b32 v{XA}, s{c}, v9")
    for t in range(1, 8): e(f"v_xor_b32 v{XA+t}, {((t&3)<<5) | ((t>>2)<<14):#x}, v{XA}")
    e("v_lshl_add_u32 v10, v4, 3, v5")
    e("v_lshlrev_b32 v11, 5, v7"); e("v_lshl_add_u32 v11, v6, 3, v11")
    e("v_lshrrev_b32 v12, 1, v5"); e(f"v_xor_b32 v12, s{ROLE}, v12"); e("v_lshl_add_u32 v12, v12, 6, v11")
    e("v_lshl_add_u32 v12, v10, 7, v12")
    e(f"s_lshl_b32 s{d}, s{b}, 12")
    e(f"v_add_u32 v{WA}, s{d}, v12")
    for tau in range(1, 4): e(f"v_xor_b32 v{WA+tau}, {tau<<12:#x}, v{WA}")
    e(f"v_lshl_add_u32 v{VZ}, v10, 6, v11"); e(f"s_lshl_b32 s{d}, s{b}, 11"); e(f"s_lshl_b32 s{c}, s{ROLE}, 5"); e(f"s_or_b32 s{d}, s{d}, s{c}")
    e(f"v_xor_b32 v{VZ}, s{d}, v{VZ}")
    e("v_bfe_u32 v13, v2, 2, 1"); e("v_xor_b32 v13, v13, v7"); e("v_add_u32 v13, -1, v13")
    e(f"v_and_b32 v{SEL}, 0x3f803f80, v13")
    for k in range(1, 4): e(f"v_mov_b32 v{SEL+k}, v{SEL}")
    e(f"v_add_u32 v{MLO}, -1, v7")
    e(f"s_lshl_b32 s{d}, s{ROLE}, 9"); e(f"s_add_u32 s{d}, s{d}, {CSX}")
    e(f"v_lshl_add_u32 v{CSR}, v3, 4, s{d}"); e(f"s_lshl_b32 s{c}, s{RG}, 2"); e(f"v_add_u32 v{CSW}, s{c}, v{CSR}")
    e(f"s_mul_i32 s{d}, s{RG}, {144*1024}"); e(f"s_lshl_b32 s{c}, s{ROLE}, 11"); e(f"s_add_u32 s{d}, s{d}, s{c}")
    e(f"v_add_u32 v{VST}, s{d}, v{LANE16}")
    e(f"s_mul_i32 s{TB}, s{I_}, {4*144*1024}")
    e(f"v_lshlrev_b32 v{BEXT+2}, 5, v8"); e(f"v_add_u32 v{BEXT+2}, {STX}, v{BEXT+2}")
    e(f"s_lshl_b32 s{d}, s{ROLE}, 4"); e(f"v_lshl_add_u32 v{BEXT+3}, v4, 3, s{d}"); e(f"v_add_u32 v{BEXT+3}, v{BEXT+3}, v{BEXT+2}")
    e(f"v_mov_b32 v{BEXT}, 0x3f803f80")
    e(f"v_add_u32 v{BEXT+1}, -1, v4")
    e(f"v_lshlrev_b32 v{C1}, 2, v8"); e(f"v_add_u32 v{C1}, {RST}, v{C1}")
    for k in range(4): e(f"v_mov_b32 v{STAT+k}, 0")
    return o

def p2_scalar_setup():
    o = []; e = lambda t, **k: o.append(I(t, **k))
    o += srd(S_WS, 22, WS_USED) + srd(S_W2, 16, 1792 * 1024) + srd(S_WO, 10, 512 * 1024)
    RB, CB, a, b = 8, 9, 12, 13
    e(f"s_and_b32 s{a}, s77, 3"); e(f"s_lshl_b32 s{RB}, s76, 2"); e(f"s_add_u32 s{RB}, s{RB}, s{a}"); e(f"s_lshr_b32 s{CB}, s77, 2")
    for m in range(4):
        if OPT["rot2"]:
            e(f"s_add_u32 s{b}, s{CB}, s{a}"); e(f"s_add_u32 s{b}, s{b}, {m}"); e(f"s_and_b32 s{b}, s{b}, 3"); e(f"s_mul_i32 s{MROT+m}, s{b}, 448")
        else: e(f"s_movk_i32 s{MROT+m}, {448*m}")
    o += srd(S_OUT, 18, 2048 * 1024)
    e(f"s_lshl_b32 s{a}, s{RB}, 1"); e(f"s_add_u32 s{a}, s{a}, s{ROLE}"); e(f"s_mul_i32 s{a}, s{a}, {144*1024}")
    e(f"s_and_b32 s{b}, s{W_}, 1"); e(f"s_lshl_b32 s{b}, s{b}, 11"); e(f"s_add_u32 s{a}, s{a}, s{b}")
    e(f"s_bfe_u32 s{b}, s{W_}, 0x10001")
    for k, D in enumerate((256, 448, 64)):
        e(f"s_mul_i32 s{T2B+k}, s{b}, {D*64}"); e(f"s_add_u32 s{T2B+k}, s{T2B+k}, s{a}")
    e(f"s_lshl_b32 s{a}, s{CB}, 7")
    for k, D in enumerate((256, 448, 64)):
        e(f"s_mul_i32 s{W2B+k}, s{ROLE}, {D*1024}"); e(f"s_add_u32 s{W2B+k}, s{W2B+k}, s{a}")
    e(f"s_lshl_b32 s{OUTO}, s{RB}, 16"); e(f"s_add_u32 s{OUTO}, s{OUTO}, s{a}")
    e(f"s_lshl_b32 s{b}, s{b}, 6"); e(f"s_add_u32 s{OUTO}, s{OUTO}, s{b}")
    e(f"s_and_b32 s{b}, s{W_}, 1"); e(f"s_lshl_b32 s{b}, s{b}, 15"); e(f"s_add_u32 s{OUTO}, s{OUTO}, s{b}")
    e(f"s_lshl_b32 s{b}, s{ROLE}, 5"); e(f"s_add_u32 s{OUTO}, s{OUTO}, s{b}")
    e(f"s_lshr_b32 s{FROW}, s{RB}, 1"); e(f"s_mul_i32 s{FROW}, s{FROW}, 640"); e(f"s_add_u32 s{FROW}, s{FROW}, {FLG}")
    e(f"s_mul_i32 s{FOWN}, s{I_}, 80"); e(f"s_add_u32 s{FOWN}, s{FOWN}, s{C_}"); e(f"s_lshl_b32 s{FOWN}, s{FOWN}, 3"); e(f"s_add_u32 s{FOWN}, s{FOWN}, {FLG}")
    e(f"s_lshl_b32 s{FCOL}, s{C_}, 7"); e(f"s_add_u32 s{FCOL}, s{FCOL}, {FLG + 80*128}")
    return o
def w2_voffsets():
    o = []; e = lambda t, **k: o.append(I(t, **k))
    e(f"v_lshrrev_b32 v{VX1}, 2, v{LANE16}"); e(f"v_and_b32 v{VX1}, 64, v{VX1}")
    e(f"v_and_b32 v{VX0}, 0x70, v{LANE16}"); e(f"v_xor_b32 v{VX0}, v{VX0}, v{VX1}")
    e(f"v_lshrrev_b32 v{VX1}, 7, v{LANE16}"); e(f"v_lshl_add_u32 v{VX0}, v{VX1}, 10, v{VX0}")
    e(f"s_lshl_b32 s12, s{RG}, 14"); e(f"v_add_u32 v{VX0}, s12, v{VX0}"); e(f"v_add_u32 v{VX1}, {8192-1024}, v{VX0}")
    return o + srd(S_AUX, 20, 256)

def mmw(acc, f, xq, xt, first, swapped=True):
    w = vr(WF + 4 * f, 4); x = vr(XF + (xq * 8 + xt) * 4, 4)
    a, b = (w, x) if swapped else (x, w)
    return I(f"v_mfma_f32_32x32x16_bf16 {vr(acc,16)}, {a}, {b}, {'0' if first else vr(acc,16)}")
def csmm(f, first):
    return I(f"v_mfma_f32_16x16x32_bf16 {vr(CS,4)}, {vr(SEL,4)}, {vr(WF+4*f,4)}, {'0' if first else vr(CS,4)}")
def stats_side(q):
    o = []
    for t in range(4):
        for k in range(4):
            r = XF + (q * 8 + t) * 4 + k
            o.append(I(f"v_dot2_f32_bf16 v{STAT + (k&1)*2}, v{r}, v{BEXT}, v{STAT + (k&1)*2}"))
            o.append(I(f"v_dot2_f32_bf16 v{STAT + 1 + (k&1)*2}, v{r}, v{r}, v{STAT + 1 + (k&1)*2}"))
    return o
def stats_write():
    return [I(f"v_add_f32 v{STAT}, v{STAT}, v{STAT+2}"), I(f"v_add_f32 v{STAT+1}, v{STAT+1}, v{STAT+3}"),
            I(f"ds_write_b64 v{BEXT+3}, v[{STAT}:{STAT+1}]")]
def stats_finish(att):
    o = []; e = lambda t, **k: o.append(I(t, **k))
    T = TMP
    e(f"ds_read_b128 v[{T}:{T+3}], v{BEXT+2}"); e(f"ds_read_b128 v[{T+4}:{T+7}], v{BEXT+2} offset:16")
    e(f"v_add_f32 v{T}, v{T}, v{T+2}"); e(f"v_add_f32 v{T+1}, v{T+1}, v{T+3}")
    e(f"v_add_f32 v{T+4}, v{T+4}, v{T+6}"); e(f"v_add_f32 v{T+5}, v{T+5}, v{T+7}")
    e(f"v_add_f32 v{T}, v{T}, v{T+4}"); e(f"v_add_f32 v{T+1}, v{T+1}, v{T+5}")
    e(f"v_mul_f32 v{T}, {f2u(-1.0/512):#x}, v{T}")
    e(f"v_mul_f32 v{T+2}, v{T}, v{T}")
    e(f"v_mul_f32 v{T+1}, {f2u(1.0/512):#x}, v{T+1}")
    e(f"v_sub_f32 v{T+1}, v{T+1}, v{T+2}"); e(f"v_max_f32 v{T+1}, 0, v{T+1}")
    e(f"v_add_f32 v{T+1}, {f2u(1e-5):#x}, v{T+1}")
    e(f"v_rsq_f32 v{T+2}, v{T+1}")
    e(f"v_cvt_pk_bf16_f32 v{T+4}, v{T}, v{T}")
    e(f"v_mul_f32 v{T+3}, v{T+1}, v{T+2}")
    if att: e(f"ds_write_b32 v{C1}, v{T+2}")
    e(f"v_and_b32 v{T+5}, 0xffff0000, v{T+4}"); e(f"v_sub_f32 v{T+5}, v{T}, v{T+5}")
    e(f"v_cvt_pk_bf16_f32 v{T+6}, v{T+5}, v{T+3}")
    e(f"v_and_b32 v{T+7}, 0xffff0000, v{T+6}"); e(f"v_sub_f32 v{T+7}, v{T+3}, v{T+7}")
    e(f"v_cvt_pk_bf16_f32 v{T+7}, v{T+7}, 0")
    e(f"v_mul_f32 v{C1}, {f2u(LOG2E):#x}, v{T+2}")
    e(f"v_and_b32 v{BEXT}, v{T+4}, v{BEXT+1}"); e(f"v_and_b32 v{BEXT+2}, v{T+7}, v{BEXT+1}")
    e(f"v_and_b32 v{BEXT+1}, v{T+6}, v{BEXT+1}"); e(f"v_mov_b32 v{BEXT+3}, 0")
    return o
def aext(b1reg, rolemask=False):
    o = []; e = lambda t, **k: o.append(I(t, **k))
    S = SC
    e(f"ds_read_b128 v[{S}:{S+3}], v{CSR}")
    if b1reg is not None:
        e(f"v_lshlrev_b32 v{S+4}, 16, v{b1reg}"); e(f"v_mov_b32 v{TR+2}, v{b1reg}")
    else: e(f"v_mov_b32 v{TR+2}, 0")
    e(f"v_mov_b32 v{TR+3}, 0")
    e(f"v_add_f32 v{S}, v{S}, v{S+1}"); e(f"v_add_f32 v{S+2}, v{S+2}, v{S+3}"); e(f"v_add_f32 v{S}, v{S}, v{S+2}")
    e(f"v_cvt_pk_bf16_f32 v{S+1}, v{S}, v{S}")
    e(f"v_cvt_pk_bf16_f32 v{TR+1}, v{S}, {'v%d' % (S+4) if b1reg is not None else '0'}")
    e(f"v_and_b32 v{S+1}, 0xffff0000, v{S+1}"); e(f"v_sub_f32 v{S+1}, v{S}, v{S+1}")
    e(f"v_cvt_pk_bf16_f32 v{TR}, v{S}, v{S+1}")
    if rolemask:
        e(f"s_sub_u32 s12, s{ROLE}, 1")
        for k in range(3): e(f"v_and_b32 v{TR+k}, s12, v{TR+k}")
    return o
def extmm(acc, swapped=True):
    a, b = (vr(TR, 4), vr(BEXT, 4)) if swapped else (vr(BEXT, 4), vr(TR, 4))
    return I(f"v_mfma_f32_32x32x16_bf16 {vr(acc,16)}, {a}, {b}, {vr(acc,16)}")
def mish8(A, P, off, tag=None):
    o = []; e = lambda t, **k: o.append(I(t, **k))
    E = TMP + 8; Wt = TMP + (4 if P == 0 else 0)
    for r in range(8): e(f"v_mul_f32 v{A+r}, v{A+r}, v{C1}")
    for r in range(8): e(f"v_exp_f32 v{E+r}, v{A+r}")
    for g in range(2):
        for r in range(4): e(f"v_fma_f32 v{TMP+P+r}, v{E+4*g+r}, -0.5, -1.0")
        for r in range(4): e(f"v_fma_f32 v{E+4*g+r}, v{E+4*g+r}, v{TMP+P+r}, -1.0")
    for r in range(8): e(f"v_rcp_f32 v{E+r}, v{E+r}")
    for r in range(8): e(f"v_fma_f32 v{A+r}, v{A+r}, v{E+r}, v{A+r}")
    for k in range(4): e(f"v_cvt_pk_bf16_f32 v{TMP+P+k}, v{A+2*k}, v{A+2*k+1}")
    e(f"buffer_store_dwordx4 {vr(TMP+P,4)}, v{VST}, {srdr(S_WS)}, s{STO} offen offset:{off} sc1", tag=tag)
    return o
def tsoff(sreg): return [I(f"s_lshl_b32 s{STO}, s{sreg}, 5"), I(f"s_add_u32 s{STO}, s{STO}, s{TB}")]
def mish_epi(acc, c): return tsoff(COL + c) + mish8(acc, 0, 0) + mish8(acc + 8, 4, 1024, f"act{c}")
def cs_write(): return [I(f"ds_write_b32 v{CSW}, v{CS}")]

def swap_reduce(a, b, op):
    return [I(f"v_permlane32_swap_b32 v{a}, v{b}"), I(f"{op} v{a}, v{a}, v{b}"), I(f"v_mov_b32 v{b}, v{a}"), I(f"v_permlane32_swap_b32 v{a}, v{b}")]
def feat_epi(acc, cadr):
    o = []; e = lambda t, **k: o.append(I(t, **k))
    A = acc; T = TMP; S = SC
    e(f"ds_read_b128 v[{TR+4}:{TR+7}], v{cadr} offset:1024")
    for k in range(8): e(f"v_cvt_pk_bf16_f32 v{T+k}, v{A+2*k}, v{A+2*k+1}")
    e(f"ds_read_b128 v[{TR}:{TR+3}], v{cadr}")
    e(f"v_mfma_f32_32x32x16_bf16 {vr(A,16)}, {vr(TR+4,4)}, {vr(T+4,4)}, 0")
    e(f"v_mfma_f32_32x32x16_bf16 {vr(A,16)}, {vr(TR,4)}, {vr(T,4)}, {vr(A,16)}")
    for hd in range(2):
        P = A + 8 * hd; mx, nm = S + 2 * hd, S + 2 * hd + 1
        e(f"v_max3_f32 v{mx}, v{P}, v{P+1}, v{P+2}"); e(f"v_max3_f32 v{nm}, -v{P}, -v{P+1}, -v{P+2}")
        e(f"v_max3_f32 v{mx}, v{mx}, v{P+3}, v{P+4}"); e(f"v_max3_f32 v{nm}, v{nm}, -v{P+3}, -v{P+4}")
        e(f"v_max3_f32 v{mx}, v{mx}, v{P+5}, v{P+6}"); e(f"v_max3_f32 v{nm}, v{nm}, -v{P+5}, -v{P+6}")
        e(f"v_max_f32 v{mx}, v{mx}, v{P+7}"); e(f"v_max_f32_e64 v{nm}, v{nm}, -v{P+7}")
    for x, y in zip(swap_reduce(S, S + 1, "v_max_f32"), swap_reduce(S + 2, S + 3, "v_max_f32")): o += [x, y]
    for k in range(4): e(f"v_mul_f32_e64 v{S+k}, -v{S+k}, v{C1}")
    for hd in range(2):
        P = A + 8 * hd; E = T + 8; bp, bn = S + 2 * hd, S + 2 * hd + 1; sp, sn = S + 4, S + 5
        for r in range(8): e(f"v_fma_f32 v{E+r}, v{P+r}, v{C1}, v{bp}")
        for r in range(8): e(f"v_fma_f32 v{P+r}, -v{P+r}, v{C1}, v{bn}")
        for r in range(8): e(f"v_exp_f32 v{E+r}, v{E+r}")
        for r in range(8): e(f"v_exp_f32 v{P+r}, v{P+r}")
        e(f"v_add_f32 v{sp}, v{E}, v{E+1}"); e(f"v_add_f32 v{S+6}, v{E+2}, v{E+3}")
        e(f"v_add_f32 v{sn}, v{P}, v{P+1}"); e(f"v_add_f32 v{S+7}, v{P+2}, v{P+3}")
        for r in (4, 6):
            e(f"v_add_f32 v{sp}, v{sp}, v{E+r}"); e(f"v_add_f32 v{S+6}, v{S+6}, v{E+r+1}")
            e(f"v_add_f32 v{sn}, v{sn}, v{P+r}"); e(f"v_add_f32 v{S+7}, v{S+7}, v{P+r+1}")
        e(f"v_add_f32 v{sp}, v{sp}, v{S+6}"); e(f"v_add_f32 v{sn}, v{sn}, v{S+7}")
        e(f"v_permlane32_swap_b32 v{sp}, v{sn}"); e(f"v_add_f32 v{sp}, v{sp}, v{sn}"); e(f"v_rcp_f32 v{sp}, v{sp}")
        e(f"v_mov_b32 v{sn}, v{sp}"); e(f"v_permlane32_swap_b32 v{sp}, v{sn}")
        for r in range(8): e(f"v_mul_f32 v{E+r}, v{E+r}, v{sp}")
        for r in range(8): e(f"v_mul_f32 v{P+r}, v{P+r}, v{sn}")
        D = T + 8 * hd
        for k in range(4): e(f"v_cvt_pk_bf16_f32 v{D+k}, v{E+2*k}, v{E+2*k+1}")
        for k in range(4): e(f"v_cvt_pk_bf16_f32 v{D+4+k}, v{P+2*k}, v{P+2*k+1}")
    return o
def k_transpose(acc, idadr, zadr):
    o = []; e = lambda t, **k: o.append(I(t, **k))
    A = acc; T = TMP; S = SC
    e(f"ds_read_b128 v[{TR}:{TR+3}], v{idadr} offset:{IDN - MISC}"); e(f"ds_read_b128 v[{TR+4}:{TR+7}], v{idadr} offset:{IDN - MISC + 1024}")
    for hd in range(2):
        D = T + 8 * hd
        e(f"v_mfma_f32_32x32x16_bf16 {vr(A,16)}, {vr(D,4)}, {vr(TR,4)}, 0")
        e(f"v_mfma_f32_32x32x16_bf16 {vr(A,16)}, {vr(D+4,4)}, {vr(TR+4,4)}, {vr(A,16)}")
        for k in range(8): e(f"v_cvt_pk_bf16_f32 v{D+k}, v{A+2*k}, v{A+2*k+1}")
        for k in range(4): e(f"v_add_f32 v{S+k}, v{A+k}, v{A+4+k}")
        for k in range(4): e(f"v_add_f32 v{S+4+k}, v{A+8+k}, v{A+12+k}")
        for k in range(4): e(f"v_add_f32 v{S+k}, v{S+k}, v{S+4+k}")
        e(f"v_add_f32 v{S}, v{S}, v{S+1}"); e(f"v_add_f32 v{S+2}, v{S+2}, v{S+3}"); e(f"v_add_f32 v{S}, v{S}, v{S+2}")
        e(f"ds_write_b32 v{zadr}, v{S} offset:{1024*hd}")
    return o

_lab = [0]
def newlab(p):
    _lab[0] += 1; return f"L_{p}{_lab[0]}"
def w0(body, p="w0"):
    l = newlab(p)
    return [I(f"s_cmp_lg_u32 s{W_}, 0"), I(f"s_cbranch_scc1 {l}"), Skip(True)] + body + [Skip(False), Raw(l + ":")]
def set_row(lvl, vt):
    return w0([I(f"v_mov_b32 v{vt}, s{NONCE}"), I(f"v_mov_b32 v{vt+1}, s{NONCE}"),
               Uncounted(f"buffer_store_dwordx2 v[{vt}:{vt+1}], off, {srdr(S_WS)}, s{FOWN} offset:{lvl*128} sc1")])
def set_col(vt):
    return w0([I(f"v_mov_b32 v{vt}, s{NONCE}"), I(f"s_lshl_b32 s10, s{I_}, 2"), I(f"s_add_u32 s10, s{FCOL}, s10"),
               Uncounted(f"buffer_store_dword v{vt}, off, {srdr(S_WS)}, s10 sc1")])
def poll(load, ev, tag):
    l0, l1 = newlab("pc"), newlab("po")
    return [I(f"s_cmp_lg_u32 s{W_}, 0"), I(f"s_cbranch_scc1 {l1}"), Skip(True), I("s_mov_b32 s11, 0"), WaitPeek(tag), Raw(l0 + ":")] + ev + [
            I(f"s_cbranch_scc1 {l1}"), I("s_add_u32 s11, s11, 1"), I("s_cmp_ge_u32 s11, 0x10000"), I(f"s_cbranch_scc1 {l1}"), I("s_sleep 4"),
            Raw("    " + load.text), Raw("    s_waitcnt vmcnt(0)"), Raw(f"    s_branch {l0}"), Skip(False), Raw(l1 + ":")]
EVAL = lambda reg: [Raw(f"    v_cmp_eq_u32 vcc, s{NONCE}, v{reg}"), Raw("    s_nop 2"), Raw("    s_cmp_eq_u64 vcc, -1")]
def row_load(lvl, tag): return I(f"buffer_load_dword v{FR}, v{FR+1}, {srdr(S_WS)}, s{FROW} offen offset:{lvl*128} sc1", tag=tag)
def row_check(lvl, tag): return poll(row_load(lvl, None), EVAL(FR), tag)
def col_load(reg, tag): return I(f"buffer_load_dword v{reg}, v{FR+1}, {srdr(S_WS)}, s{FCOL} offen sc1", tag=tag)
def col_check(reg, tag): return poll(col_load(reg, None), EVAL(reg), tag)
def nonce_load(tag): return I(f"buffer_load_dword v{FR}, off, {srdr(S_AUX)}, 0 sc1", tag=tag)
def nonce_check(tag):
    return poll(nonce_load(None), [Raw(f"    v_readfirstlane_b32 s{NONCE}, v{FR}"), Raw("    s_nop 2"), Raw(f"    s_cmp_lg_u32 s{NONCE}, 0")], tag)

class Plan:
    def __init__(self, att):
        self.att = att
        self.P0 = P0 = 12 if att else 14
        self.N = P0 + 18
        nb = {7, 9, 11} if OPT["nobar"] else set()
        if att: nb -= {9, 11}
        self.nobar = nb
        q = [(f"W{s}", s, 2) for s in range(4, 12)]
        if not att: q += [("H0", 12, 2), ("H1", 13, 2)]
        order = ["W2_0", "W2_1", "W2_2", "T_0", "T_1", "T_2"] + [x for s in range(3, 18) for x in (f"W2_{s}", f"T_{s}")]
        for nme in order:
            sg = int(nme.split("_")[1])
            q.append((nme, P0 + sg, max(7, OPT["tfirst"]) if nme.startswith("T") else 7))
        self.res = {}
        if att: self.res = {"RED0": (8, 9), "RED1": (8, 9), "HOP": (P0 + OPT["h1"], P0 + OPT["h1"] + 3)}
        else: self.res = {"EXCH": (P0, P0 + 1)}
        self.res["XB0"] = (self.N - 1, self.N); self.res["XB1"] = (self.N - 1, self.N)
        busy = {0: 3, 1: 3, 2: 3, 3: 1, 4: 1, 5: 1, 6: 2, 7: 2, 8: 2}
        self.slot = {}; self.issue = {n: [] for n in range(self.N)}
        free = []
        qi = 0
        for n in range(2, self.N):
            if n not in nb:
                for sl in sorted(busy):
                    if busy[sl] < n: free.append(sl); del busy[sl]
            for r, (a, z) in self.res.items():
                if a == n:
                    sl = free.pop(0); self.slot[r] = sl; busy[sl] = z
            hold = sum(1 for r, (a, z) in self.res.items() if a == n + 1)
            freed_next = sum(1 for sl in busy if busy[sl] < n + 1) if (n + 1) not in nb else 0
            cap = (OPT["cap1"] if n < P0 else OPT["cap2"]) // 2
            if att and n in (P0 + OPT["h1"], P0 + OPT["h1"] + 1): cap = 1
            while qi < len(q) and cap > 0 and len(free) > max(0, hold - freed_next) and q[qi][2] <= n:
                nme, use, _ = q[qi]
                need = use
                while need in nb: need -= 1
                assert n < need, (nme, n, use)
                sl = free.pop(0); self.slot[nme] = sl; busy[sl] = use
                self.issue[n].append(nme); qi += 1; cap -= 1
        assert qi == len(q)
        self.step_of = {x: n for n in self.issue for x in self.issue[n]}
    CHK = {"T_0": 0, "T_4": 1, "T_8": 2, "T_12": 3, "T_14": 4}
    def dmas(self, n):
        g = []
        for nme, lvl in self.CHK.items():
            if self.step_of[nme] == n + 1: g.append([row_load(lvl, "fl" + nme)])
        for nme in self.issue[n]:
            sl = self.slot[nme]
            if nme[0] == "H": d = dma_h(int(nme[1]), sl, nme)
            elif nme.startswith("W2_"): d = dma_w2(int(nme[3:]), sl, nme)
            elif nme.startswith("T_"): d = dma_t(int(nme[2:]), sl, nme)
            else: s = int(nme[1:]); d = dma_w(s // 4, s % 4, sl, nme)
            g += groups(d)
        return g
    def checks(self, n):
        o = []
        for nme, lvl in self.CHK.items():
            if self.step_of[nme] == n + 1:
                assert n + 1 not in self.nobar
                o += row_check(lvl, "fl" + nme)
        return o
    def need_tag(self, n):
        steps = [n]
        while steps[-1] + 1 in self.nobar: steps.append(steps[-1] + 1)
        names = []
        for s in steps:
            if s < 4: names.append(f"st{s}")
            elif s < 12: names.append(f"W{s}")
            elif s < self.P0: names.append(f"H{s-12}")
            else: names += [f"W2_{s-self.P0}", f"T_{s-self.P0}"]
        return names

def bar(tags):
    return [Wait(vm=t) for t in tags] + [Wait(lgkm="all"), I("s_barrier")] + ST()

def spread(gaps, dmas):
    n = len(gaps)
    for k, d in enumerate(dmas): gaps[min(n - 1, (k * n) // len(dmas))][1] += d
def flat(head, gaps):
    o = list(head)
    for m, f in gaps: o += ([m] if m is not None else []) + f
    return o

def p1_step(s, plan, wa, xa, prev, cur, pre_ext, ext, dmas):
    half = s >= 12
    xph = s < 4
    base = (W0SLOT[s] if xph else plan.slot[f"H{s-12}" if half else f"W{s}"]) * SLOT
    def rd(f):
        r = WF + 4 * f
        if half: reg = WA + ((f & 3) >> 1); a0 = base + (f >> 2) * 8192 + (f & 1) * 1024; du = 256
        else: reg = WA + (f >> 1); a0 = base + (f & 1) * 2048; du = 512
        o = [I(f"ds_read_b64_tr_b16 v[{r}:{r+1}], v{reg} offset:{wa.off(a0)}"), I(f"ds_read_b64_tr_b16 v[{r+2}:{r+3}], v{reg} offset:{wa.off(a0 + du)}")]
        if xph: o.append(I(f"ds_read_b128 {vr(XF + (s*8+f)*4, 4)}, v{XA+f} offset:{xa.off(XSLOT[s]*SLOT)}"))
        return o
    head = []
    if s == 12:
        head += [I(f"v_mov_b32 v{WA}, v{VZ}"), I(f"v_xor_b32 v{WA+1}, 0x800, v{VZ}")]; wa.regs = [WA, WA + 1]; wa.bias = 0
    head += wa.reach(base, base + (8192 + 2047 if half else 4095))
    if xph: head += xa.reach(XSLOT[s] * SLOT, XSLOT[s] * SLOT)
    gaps = []
    if prev:
        fol = {4: [0, 1], 5: [2, 3], 6: [4, 5], 7: [6]}
        for f in range(4, 8): gaps.append([mmw(prev[f][0], f, *prev[f][1:]), sum((rd(k) for k in fol[f]), [])])
        if pre_ext:
            lds = [x for x in pre_ext if x.kind == "dsr"]; rest = [x for x in pre_ext if x.kind != "dsr"]
            head = lds + head
            for g, p in zip(gaps[1:], split_cost(rest, [1, 1, 1])): g[1] += p
        if ext: gaps.append([ext, []])
        gaps[0][1] = head + gaps[0][1]; head = []
        late = [7]
    else:
        for f in range(8): head += rd(f)
        late = []
    for f in range(4):
        fl = sum((rd(k) for k in late), []) if f == 0 else []
        if f < 2: fl.append(csmm(f, cur[f][3]))
        elif half: fl.append(csmm(f + 2, False))
        gaps.append([mmw(cur[f][0], f, *cur[f][1:]), fl])
    spread(gaps, dmas)
    return flat(head, gaps)

def p2_setup():
    o = []; e = lambda t, **k: o.append(I(t, **k))
    L = WF
    e(f"s_and_b32 s12, s{W_}, 1"); e("s_lshl_b32 s12, s12, 13"); e(f"s_lshl_b32 s13, s{ROLE}, 12"); e("s_add_u32 s12, s12, s13")
    e(f"v_add_u32 v{RT}, s12, v{LANE16}")
    e(f"v_lshrrev_b32 v{L}, 9, v{LANE16}"); e(f"v_bfe_u32 v{L+1}, v{LANE16}, 6, 2"); e(f"v_lshl_add_u32 v{L+2}, v{L}, 2, v{L+1}")
    e(f"v_bfe_u32 v{L+3}, v{LANE16}, 8, 1"); e(f"v_lshlrev_b32 v{L+3}, 5, v{L+3}"); e(f"v_bfe_u32 v{L+4}, v{LANE16}, 4, 2"); e(f"v_lshl_add_u32 v{L+3}, v{L+4}, 3, v{L+3}")
    e(f"s_bfe_u32 s12, s{W_}, 0x10001"); e(f"v_lshrrev_b32 v{L+1}, 1, v{L+1}"); e(f"v_xor_b32 v{L+1}, s12, v{L+1}")
    e(f"v_lshl_add_u32 v{L+3}, v{L+1}, 6, v{L+3}"); e(f"v_lshl_add_u32 v{L+3}, v{L+2}, 7, v{L+3}")
    e(f"s_lshl_b32 s13, s{ROLE}, 13"); e(f"v_add_u32 v{RW}, s13, v{L+3}")
    return o
def xres_load():
    o = []; e = lambda t, **k: o.append(I(t, **k))
    L = VO + 1
    e(f"v_bfe_u32 v{L}, v{LANE16}, 4, 5"); e(f"v_lshlrev_b32 v{L}, 10, v{L}"); e(f"v_lshrrev_b32 v{L+1}, 9, v{LANE16}")
    e(f"v_lshl_add_u32 v{VO}, v{L+1}, 4, v{L}"); e(f"v_lshl_add_u32 v{L}, v{L+1}, 3, v{L}")
    e(f"buffer_load_dwordx2 v[{XR}:{XR+1}], v{L}, {srdr(S_X)}, s{OUTO} offen"); e(f"buffer_load_dwordx2 v[{XR+2}:{XR+3}], v{L}, {srdr(S_X)}, s{OUTO} offen offset:16")
    return o
def p2_step(sg, plan, rt, rw, prev, pre_ext, ext, dmas):
    tb, wb = plan.slot[f"T_{sg}"] * SLOT, plan.slot[f"W2_{sg}"] * SLOT
    rds = rt.reach(tb, tb + 3072) + rw.reach(wb, wb + 7168)
    for t in range(4):
        rds += [I(f"ds_read_b128 {vr(TFR+4*t,4)}, v{RT} offset:{rt.off(tb + t*1024)}"),
                I(f"ds_read_b64_tr_b16 v[{WFR+4*t}:{WFR+4*t+1}], v{RW} offset:{rw.off(wb + t*2048)}"),
                I(f"ds_read_b64_tr_b16 v[{WFR+4*t+2}:{WFR+4*t+3}], v{RW} offset:{rw.off(wb + t*2048 + 1024)}")]
    gaps = []
    if prev:
        lds = [x for x in pre_ext if x.kind == "dsr"]; rest = [x for x in pre_ext if x.kind != "dsr"]
        su = p2_setup()
        for f in range(4, 8): gaps.append([mmw(prev[f][0], f, *prev[f][1:]), []])
        gaps[0][1] = lds + su[:8]; gaps[1][1] = su[8:]; gaps[2][1] = rds; gaps[3][1] = rest
        gaps.append([ext, []])
    else:
        gaps.append([None, []]); gaps.append([None, rds])
    acc = AO if sg < 14 else AS
    for t in range(4):
        first = sg in (0, 14) and t == 0
        gaps.append([I(f"v_mfma_f32_32x32x16_bf16 {vr(acc,16)}, {vr(WFR+4*t,4)}, {vr(TFR+4*t,4)}, {'0' if first else vr(acc,16)}"), []])
    spread(gaps, dmas)
    return flat([], gaps)

def final(plan):
    o = []; e = lambda t, **k: o.append(I(t, **k))
    a, b = plan.slot["XB0"] * SLOT, plan.slot["XB1"] * SLOT
    e(f"s_lshl_b32 s12, s{RG}, 12"); e(f"v_add_u32 v4, s12, v{LANE16}")
    e(f"v_add_u32 v5, {b}, v4"); e(f"v_add_u32 v4, {a}, v4")
    lab = newlab("hi")
    e(f"s_cmp_lg_u32 s{ROLE}, 0"); e(f"s_cbranch_scc1 {lab}")
    def tail(keep, send, wr, rdr):
        t = []; e = lambda x, **k: t.append(I(x, **k))
        e(f"ds_write_b128 v{wr}, {vr(AO+send,4)}"); e(f"ds_write_b128 v{wr}, {vr(AO+send+4,4)} offset:1024")
        e(f"ds_write_b128 v{wr}, {vr(AS+send,4)} offset:2048"); e(f"ds_write_b128 v{wr}, {vr(AS+send+4,4)} offset:3072")
        R, E, X = 32, 48, 56
        for k in range(4):
            e(f"v_lshlrev_b32 v{X+2*k}, 16, v{XR+k}"); e(f"v_and_b32 v{X+2*k+1}, 0xffff0000, v{XR+k}")
        t += [Wait(lgkm="all"), I("s_barrier")]
        for k in range(4): e(f"ds_read_b128 {vr(R+4*k,4)}, v{rdr} offset:{1024*k}")
        G, S_ = AO + keep, AS + keep
        for r in range(8): e(f"v_add_f32 v{G+r}, v{G+r}, v{R+r}")
        for r in range(8): e(f"v_exp_f32_e64 v{E+r}, -v{G+r}")
        for r in range(8): e(f"v_add_f32 v{S_+r}, v{S_+r}, v{R+8+r}")
        for r in range(8): e(f"v_fma_f32 v{E+r}, v{E+r}, v6, v6")
        for r in range(8): e(f"v_rcp_f32 v{E+r}, v{E+r}")
        for r in range(8): e(f"v_mul_f32 v{S_+r}, v{S_+r}, v{G+r}")
        for r in range(8): e(f"v_fma_f32 v{X+r}, v{S_+r}, v{E+r}, v{X+r}")
        for k in range(4): e(f"v_cvt_pk_bf16_f32 v{E+k}, v{X+2*k}, v{X+2*k+1}")
        e(f"v_permlane32_swap_b32 v{E}, v{E+2}"); e(f"v_permlane32_swap_b32 v{E+1}, v{E+3}")
        e(f"buffer_store_dwordx4 {vr(E,4)}, v{VO}, {srdr(S_OUT)}, s{OUTO} offen")
        return t
    o.insert(0, I(f"v_mov_b32 v6, {f2u(LOG2E):#x}"))
    return o, tail(0, 8, 4, 5), lab, tail(8, 0, 5, 4)

def chunk_list(acc, q, sw, first): return [(acc, q, f, first and f == 0, sw) for f in range(8)]
def half_list(hs): return [(ACC[1], 2 * hs + (f >> 2), f & 3, hs == 0 and f == 0, True) for f in range(8)]

def start_dmas(o, rest):
    g1 = groups(dma_xstep(1))
    parts = split_cost(rest, [6] + [1] * (len(g1) - 1))
    for p, g in zip(parts, g1): o += p + g

def path(att):
    plan = Plan(att); P0 = plan.P0
    o = []; e = lambda t, **k: o.append(I(t, **k))
    if att:
        e(f"s_lshl_b32 s{COL+2}, s{C_}, 7"); e(f"s_add_u32 s{COL}, s{COL+2}, 1024"); e(f"s_add_u32 s{COL+1}, s{COL+2}, 2048")
    else:
        e(f"s_mul_i32 s{COL}, s{C_}, 448"); e(f"s_and_b32 s70, s{C_}, 1"); e("s_lshl_b32 s71, s70, 6")
        e("s_cmp_eq_u32 s70, 0"); e(f"s_cselect_b32 s{COL+3}, 384, 0"); e(f"s_add_u32 s{COL+3}, s{COL+3}, s{COL}")
        e(f"s_add_u32 s{COL}, s{COL}, s71"); e(f"s_add_u32 s{COL+1}, s{COL}, 128"); e(f"s_add_u32 s{COL+2}, s{COL}, 256")
    e("s_waitcnt lgkmcnt(0)")
    o += srd(S_X, 4, 2048 * 1024) + (srd(S_W, 6, 512 * 3072) if att else srd(S_W, 12, 512 * 3584))
    o += ST()
    if att:
        l = newlab("np")
        o += [I(f"s_or_b32 s70, s2, s{W_}"), I(f"s_cbranch_scc1 {l}"), Skip(True), I("s_memrealtime s[70:71]"), I("v_mov_b32 v8, 0"), I("s_waitcnt lgkmcnt(0)"),
              I("s_or_b32 s70, s70, 1"), I("v_mov_b32 v9, s70"), Uncounted("global_store_dword v8, v9, s[20:21] sc1"), Skip(False), Raw(l + ":")]
    o += dma_xstep(0)
    r = lane_setup(); er = lambda t, **k: r.append(I(t, **k))
    side = {n: [] for n in range(plan.N)}; tail = {n: [] for n in range(plan.N)}; headx = {n: [] for n in range(plan.N)}
    extra_wait = {n: [] for n in range(plan.N)}; xdma = {n: [] for n in range(plan.N)}
    V = ACC[1]
    if att:
        CADR, IDADR, ZADR, RSR = B1, B1 + 1, B1 + 2, B1 + 3
        r += srd(S_AUX, 8, 32 * 512)
        er("v_and_b32 v13, 15, v2"); er("v_lshlrev_b32 v13, 1, v13"); er("v_lshl_add_u32 v13, v7, 9, v13"); er("v_lshl_add_u32 v13, v4, 7, v13")
        er(f"s_lshl_b32 s70, s{C_}, 11"); er(f"s_lshl_b32 s71, s{ROLE}, 10"); er("s_add_u32 s70, s70, s71")
        W = TMP + 4; W2 = STAT + 4
        for j in range(8):
            er(f"buffer_load_ushort v{(W2 if j & 1 else W) + (j>>1)}, v13, {srdr(S_AUX)}, s70 offen offset:{((j >> 2) * 8 + (j & 3))*32}")
        er(f"v_add_u32 v{IDADR}, {MISC}, v{LANE16}")
        er(f"s_lshl_b32 s71, s{ROLE}, 11"); er(f"s_add_u32 s72, s71, {WPH}"); er(f"v_add_u32 v{CADR}, s72, v{LANE16}")
        er(f"s_lshl_b32 s72, s{RG}, 3"); er("s_add_u32 s72, s72, s71"); er(f"s_add_u32 s72, s72, {ZX}")
        er(f"v_lshl_add_u32 v{ZADR}, v3, 5, s72"); er(f"v_lshl_add_u32 v{ZADR}, v4, 2, v{ZADR}")
        er(f"s_lshl_b32 s72, s{RG}, 7"); er(f"s_add_u32 s72, s72, {RST}"); er(f"v_lshl_add_u32 v{RSR}, v4, 4, s72")
        J = TMP + 8
        er("v_bfe_u32 v8, v2, 2, 1"); er("v_xor_b32 v8, v8, v4"); er("v_add_u32 v8, -1, v8")
        er("v_and_b32 v9, 1, v2"); er("v_lshlrev_b32 v9, 4, v9"); er("v_mov_b32 v10, 0x3f80"); er("v_lshlrev_b32 v9, v9, v10"); er("v_and_b32 v9, v9, v8")
        er("v_bfe_u32 v10, v2, 3, 1"); er("v_bfe_u32 v11, v2, 1, 1"); er("v_lshl_add_u32 v10, v10, 1, v11")
        for d in range(4):
            er(f"v_cmp_eq_u32 vcc, {d}, v10"); er(f"v_cndmask_b32 v{J+4+d}, 0, v9, vcc")
        for d in range(4): er(f"v_and_b32 v{J+d}, v{J+4+d}, v{MLO}")
        for d in range(4): er(f"v_xor_b32 v{J+4+d}, v{J+4+d}, v{J+d}")
        er(f"ds_write_b128 v{IDADR}, v[{J}:{J+3}] offset:{IDN-MISC}"); er(f"ds_write_b128 v{IDADR}, v[{J+4}:{J+7}] offset:{IDN-MISC+1024}")
        ws_ = []
        for d in range(4): ws_.append(I(f"v_lshl_or_b32 v{W+d}, v{W2+d}, 16, v{W+d}"))
        for d in range(4): ws_.append(I(f"v_and_b32 v{TMP+d}, v{W+d}, v{MLO}"))
        for d in range(4): ws_.append(I(f"v_xor_b32 v{W+d}, v{W+d}, v{TMP+d}"))
        ws_ += [I(f"ds_write_b128 v{CADR}, v[{TMP}:{TMP+3}]"), I(f"ds_write_b128 v{CADR}, v[{W}:{W+3}] offset:1024")]
        side[2] += ws_
        for q, p in enumerate(split_cost(feat_epi(ACC[0], CADR) + k_transpose(ACC[0], IDADR, ZADR), [3, 8, 8, 8])): side[4 + q] += p
        ev = lambda t, **k: side[8].append(I(t, **k))
        for qd in range(4):
            R = TR + 4 * ((qd + 1) & 1)
            ev(f"ds_read_b128 v[{R}:{R+3}], v{RSR} offset:{qd*32}")
            for k in range(4): ev(f"v_mul_f32 v{V+4*qd+k}, v{V+4*qd+k}, v{R+k}")
        for k in range(8): ev(f"v_cvt_pk_bf16_f32 v{V+k}, v{V+2*k}, v{V+2*k+1}")
        for k in range(8): ev(f"v_and_b32 v{V+8+k}, v{V+k}, v{MLO}")
        for k in range(8): ev(f"v_xor_b32 v{V+k}, v{V+k}, v{V+8+k}")
        ev(f"v_mfma_f32_32x32x16_bf16 v[0:15], {vr(TMP,4)}, {vr(V+8,4)}, 0")
        ev(f"v_mfma_f32_32x32x16_bf16 v[0:15], {vr(TMP+4,4)}, {vr(V+12,4)}, v[0:15]")
        ev(f"v_mfma_f32_32x32x16_bf16 v[0:15], {vr(TMP+8,4)}, {vr(V,4)}, v[0:15]")
        ev(f"v_mfma_f32_32x32x16_bf16 v[0:15], {vr(TMP+12,4)}, {vr(V+4,4)}, v[0:15]")
        r0, r1 = plan.slot["RED0"] * SLOT, plan.slot["RED1"] * SLOT
        ev(f"s_mul_i32 s15, s{ROLE}, {(r1 - r0) & 0xffffffff:#x}"); ev(f"s_add_u32 s15, s15, {r0}")
        ev(f"s_lshl_b32 s12, s{RG}, 12"); ev("s_add_u32 s12, s12, s15"); ev(f"v_add_u32 v{VH}, s12, v{LANE16}")
        tail[8] += [I(f"ds_write_b128 v{VH}, v[{4*k}:{4*k+3}] offset:{1024*k}") for k in range(4)]
        e9 = lambda t, **k: side[9].append(I(t, **k))
        e9(f"s_lshl_b32 s18, s{RG}, 10"); e9("s_add_u32 s12, s18, s15"); e9(f"v_add_u32 v{VH}, s12, v{LANE16}")
        for k in range(4): e9(f"ds_read_b128 v[{4*k}:{4*k+3}], v{VH} offset:{4096*k}")
        e9(f"s_lshl_b32 s12, s{ROLE}, 11"); e9(f"s_add_u32 s12, s12, {ZX}"); e9(f"v_lshl_add_u32 v{ZADR}, v{LANE16}, 1, s12")
        e9(f"ds_read_b128 v[{V}:{V+3}], v{ZADR}"); e9(f"ds_read_b128 v[{V+4}:{V+7}], v{ZADR} offset:16")
        for k in range(4): e9(f"v_add_f32 v{k}, v{k}, v{4+k}")
        for k in range(4): e9(f"v_add_f32 v{8+k}, v{8+k}, v{12+k}")
        for k in range(4): e9(f"v_add_f32 v{k}, v{k}, v{8+k}")
        e9(f"s_lshl_b32 s19, s{C_}, 4"); e9(f"s_add_u32 s19, s19, s{I_}"); e9("s_lshl_b32 s19, s19, 1"); e9(f"s_add_u32 s19, s19, s{ROLE}")
        e9(f"s_lshl_b32 s{STO}, s19, 12"); e9(f"s_add_u32 s{STO}, s{STO}, s18"); e9(f"s_add_u32 s{STO}, s{STO}, {KVP}")
        e9(f"buffer_store_dwordx4 v[0:3], v{LANE16}, {srdr(S_WS)}, s{STO} offen sc1")
        for k in range(4): e9(f"v_add_f32 v{V+k}, v{V+k}, v{V+4+k}")
        e9(f"v_add_f32 v{V}, v{V}, v{V+1}"); e9(f"v_add_f32 v{V+2}, v{V+2}, v{V+3}"); e9(f"v_add_f32 v{V}, v{V}, v{V+2}")
        e9(f"s_lshl_b32 s{STO}, s19, 8"); e9(f"s_add_u32 s{STO}, s{STO}, {ZP}"); e9(f"v_lshrrev_b32 v{V+4}, 2, v{LANE16}")
        e9(f"buffer_store_dword v{V}, v{V+4}, {srdr(S_WS)}, s{STO} offen sc1", tag="kvst")
        extra_wait[OPT["kvf"]].append("kvst"); headx[OPT["kvf"]] += set_col(V + 6)
        for k, p in enumerate(split_cost(feat_epi(ACC[0], CADR), [1, 3, 3])): side[P0 + k] += p
        n1 = P0 + OPT["h1"]
        CF = V + 8
        headx[n1 - 1] += [col_load(CF, "c1")]
        tail[n1 - 1] += col_check(CF, "c1")
        hop = plan.slot["HOP"] * SLOT
        PB = 192
        xd = xdma[n1]
        xd.append([I(f"s_lshl_b32 s14, s{C_}, 13"), I(f"s_add_u32 s14, s14, s{W1024}"), I(f"s_add_u32 s14, s14, {ZP}"), I(f"s_add_u32 m0, s{W1024}, {hop}"),
                   I(f"buffer_load_dwordx4 v{LANE16}, {srdr(S_WS)}, s14 offen sc1 lds", tag="hop")])
        for k in range(16):
            g = []
            if k == 0: g += [I(f"s_lshl_b32 s14, s{C_}, 17"), I(f"s_add_u32 s14, s14, s{W1024}"), I(f"s_add_u32 s14, s14, {KVP}")]
            else: g.append(I("s_add_u32 s14, s14, 8192"))
            g.append(I(f"buffer_load_dwordx4 {vr(PB+4*k,4)}, v{LANE16}, {srdr(S_WS)}, s14 offen sc1"))
            xdma[n1 + (k >= 8)].append(g)
        extra_wait[n1 + 2].append("hop")
        g = []; eg = lambda t, **k: g.append(I(t, **k))
        ZB = WF
        eg(f"v_lshrrev_b32 v{V+7}, 9, v{LANE16}"); eg(f"v_and_b32 v{V+8}, 0x1f0, v{LANE16}"); eg(f"v_lshl_add_u32 v{V+7}, v{V+7}, 12, v{V+8}")
        eg(f"v_add_u32 v{V+7}, {hop}, v{V+7}")
        for k in range(8): eg(f"ds_read_b128 {vr(ZB+4*k,4)}, v{V+7} offset:{k*512}")
        eg(f"v_bfe_u32 v{V+8}, v{LANE16}, 7, 2"); eg(f"v_lshlrev_b32 v{V+8}, 6, v{V+8}")
        eg(f"v_bfe_u32 v{V+9}, v{LANE16}, 4, 1"); eg(f"v_lshl_add_u32 v{V+8}, v{V+9}, 5, v{V+8}")
        eg(f"v_bfe_u32 v{V+9}, v{LANE16}, 5, 2"); eg(f"v_lshl_add_u32 v{V+8}, v{V+9}, 3, v{V+8}"); eg(f"v_add_u32 v{V+8}, {ZF}, v{V+8}")
        for st_ in (4, 2, 1):
            for k in range(st_):
                for c in range(4): eg(f"v_add_f32 v{ZB+4*k+c}, v{ZB+4*k+c}, v{ZB+4*(k+st_)+c}")
        for c in range(4): eg(f"v_mov_b32 v{ZB+4+c}, v{ZB+c}")
        for c in range(4): eg(f"v_permlane32_swap_b32 v{ZB+c}, v{ZB+4+c}")
        for c in range(4): eg(f"v_add_f32 v{ZB+c}, v{ZB+c}, v{ZB+4+c}")
        eg(f"v_cvt_pk_bf16_f32 v{ZB}, v{ZB}, v{ZB+1}"); eg(f"v_cvt_pk_bf16_f32 v{ZB+1}, v{ZB+2}, v{ZB+3}")
        eg(f"ds_write_b64 v{V+8}, v[{ZB}:{ZB+1}]"); eg("s_waitcnt lgkmcnt(0)")
        headx[n1 + 2] += w0(g)
        e2 = lambda t, **k: side[n1 + 2].append(I(t, **k))
        for st_ in (8, 4, 2, 1):
            for k in range(st_):
                for c in range(4): e2(f"v_add_f32 v{PB+4*k+c}, v{PB+4*k+c}, v{PB+4*(k+st_)+c}")
        e2(f"v_cvt_pk_bf16_f32 v{PB}, v{PB}, v{PB+1}"); e2(f"v_cvt_pk_bf16_f32 v{PB+1}, v{PB+2}, v{PB+3}")
        KVF = hop + 8192
        e2(f"s_lshl_b32 s12, s{ROLE}, 11"); e2(f"s_add_u32 s12, s12, {KVF}"); e2(f"v_lshl_add_u32 v{V+10}, v{LANE16}, 1, s12")
        e2(f"s_lshl_b32 s12, s{RG}, 3"); e2(f"v_add_u32 v{V+11}, s12, v{V+10}")
        e2(f"ds_write_b64 v{V+11}, v[{PB}:{PB+1}]")
        e2(f"v_lshrrev_b32 v{V+12}, 9, v{LANE16}"); e2(f"s_lshl_b32 s12, s{ROLE}, 7"); e2(f"s_add_u32 s12, s12, {ZF}")
        e2(f"v_lshl_add_u32 v{V+12}, v{V+12}, 5, s12"); e2(f"v_add_u32 v{V+13}, 64, v{V+12}")
        e2(f"v_bfi_b32 v{V+12}, v{MLO}, v{V+10}, v{V+12}"); e2(f"v_bfi_b32 v{V+13}, v{MLO}, v{V+13}, v{V+10}")
        n2 = n1 + 3
        headx[n2] += [I(f"ds_read_b128 v[0:3], v{V+12}"), I(f"ds_read_b128 v[4:7], v{V+12} offset:16"),
                      I(f"ds_read_b128 v[8:11], v{V+13}"), I(f"ds_read_b128 v[12:15], v{V+13} offset:16")]
        eo = lambda t, **k: side[n2].append(I(t, **k))
        OA, OB = 208, 224
        eo(f"v_mfma_f32_32x32x16_bf16 {vr(OA,16)}, v[0:3], {vr(TMP,4)}, 0")
        eo(f"v_mfma_f32_32x32x16_bf16 {vr(OA,16)}, v[4:7], {vr(TMP+4,4)}, {vr(OA,16)}")
        eo(f"v_mfma_f32_32x32x16_bf16 {vr(OB,16)}, v[8:11], {vr(TMP+8,4)}, 0")
        eo(f"v_mfma_f32_32x32x16_bf16 {vr(OB,16)}, v[12:15], {vr(TMP+12,4)}, {vr(OB,16)}")
        eo(f"s_lshl_b32 s{STO}, s{C_}, 12"); eo(f"s_add_u32 s{STO}, s{STO}, s{TB}"); eo(f"s_add_u32 s{STO}, s{STO}, {112*1024}")
        for hd, (num, den) in enumerate(((OA, OA + 8), (OB + 8, OB))):
            eo(f"v_add_f32 v{den}, {f2u(1e-6):#x}, v{den}"); eo(f"v_rcp_f32 v{den}, v{den}")
            for x in range(8): eo(f"v_mul_f32 v{num+x}, v{num+x}, v{den}")
            for k in range(4): eo(f"v_cvt_pk_bf16_f32 v{num+k}, v{num+2*k}, v{num+2*k+1}")
            eo(f"buffer_store_dwordx4 {vr(num,4)}, v{VST}, {srdr(S_WS)}, s{STO} offen offset:{1024*hd} sc1", tag="ost" if hd else None)
        extra_wait[n2 + 3].append("ost"); headx[n2 + 3] += set_row(4, V + 6)
        SW = [True, False, True]
        lists = [chunk_list(ACC[(s // 4) & 1], s % 4, SW[s // 4], s % 4 == 0) for s in range(12)]
        exts = {4: (stats_finish(True) + aext(None), extmm(ACC[0])), 8: (aext(None), extmm(ACC[1], False)), 12: (aext(None), extmm(ACC[0]))}
    else:
        er("v_lshrrev_b32 v13, 2, v2"); er("v_lshl_add_u32 v13, v1, 4, v13"); er("v_lshlrev_b32 v14, 4, v6")
        er(f"v_mad_u32_u24 v{VH}, v13, s69, v14")
        r += srd(S_AUX, 14, 3584)
        er("v_lshlrev_b32 v13, 1, v3"); er(f"s_lshl_b32 s70, s{ROLE}, 6"); er("v_add_u32 v14, s70, v13")
        for c in range(3): er(f"buffer_load_ushort v{B1+c}, v14, {srdr(S_AUX)}, s{COL+c} offen")
        er(f"buffer_load_ushort v{B1+3}, v13, {srdr(S_AUX)}, s{COL+3} offen")
        for c in range(2):
            for q, p in enumerate(split_cost(mish_epi(ACC[c], c), [3, 8, 8, 8])): side[4 + 4 * c + q] += p
        for q, p in enumerate(split_cost(mish_epi(ACC[0], 2), [3, 8, 6, 8])): side[12 + q] += p
        FV = SC + 6
        for lvl, n in ((0, OPT["f0"]), (1, OPT["f1"]), (2, P0 + 3)):
            extra_wait[n].append(f"act{lvl}"); headx[n] += set_row(lvl, FV)
        ex = plan.slot["EXCH"] * SLOT
        tail[P0] += [I(f"s_add_u32 s12, s{W2048}, {ex}"), I(f"v_add_u32 v{VH}, s12, v{LANE16}"),
                     I(f"ds_write_b128 v{VH}, {vr(V+8,4)}"), I(f"ds_write_b128 v{VH}, {vr(V+12,4)} offset:1024")]
        hx = [I(f"s_xor_b32 s12, s{W2048}, 8192"), I(f"s_add_u32 s12, s12, {ex}"), I(f"v_add_u32 v{VH}, s12, v{LANE16}"),
              I(f"ds_read_b128 {vr(V+8,4)}, v{VH}"), I(f"ds_read_b128 {vr(V+12,4)}, v{VH} offset:1024")]
        headx[P0 + 1] += hx
        l3 = [I(f"v_add_f32 v{V+k}, v{V+k}, v{V+8+k}") for k in range(8)] + tsoff(COL + 3)
        l3 += [I(f"s_lshl_b32 s12, s{ROLE}, 10"), I(f"s_sub_u32 s{STO}, s{STO}, s12")] + mish8(V, 0, 0, "act3")
        side[P0 + 2] += l3
        extra_wait[P0 + 4].append("act3"); headx[P0 + 4] += set_row(3, FV)
        lists = [chunk_list(ACC[(s // 4) & 1], s % 4, True, s % 4 == 0) for s in range(12)] + [half_list(0), half_list(1)]
        exts = {4: (stats_finish(False) + aext(B1), extmm(ACC[0])), 8: (aext(B1 + 1), extmm(ACC[1])), 12: (aext(B1 + 2), extmm(ACC[0])),
                14: (aext(B1 + 3, True), extmm(ACC[1]))}
    r += p2_scalar_setup()
    headx[6] += [I(f"v_bfe_u32 v{FR+1}, v{LANE16}, 4, 4"), I(f"v_lshlrev_b32 v{FR+1}, 2, v{FR+1}"), nonce_load("nonce")]
    tail[7] += nonce_check("nonce")
    start_dmas(o, r)
    if OPT["prio"]:
        lab = newlab("pr")
        o += [I(f"s_cmp_eq_u32 s{ROLE}, 0"), I(f"s_cbranch_scc1 {lab}"), I("s_setprio 1"), Raw(lab + ":")]
    side[3] += w2_voffsets()
    side[P0 + 10] += xres_load()
    wa = AddrGroup([WA + k for k in range(4)]); xa = AddrGroup([XA + k for k in range(8)])
    rt = AddrGroup([RT]); rw = AddrGroup([RW])
    for n in range(plan.N):
        if n not in plan.nobar: o += bar(plan.need_tag(n) + extra_wait[n])
        else: assert not extra_wait[n] and not headx[n]
        o += headx[n]
        pre, ext = exts.get(n, (None, None))
        dm = groups(dma_xstep(n + 2)) if n < 2 else plan.dmas(n) + xdma[n]
        lead = 6 if ext else 0
        if n < P0:
            m = p1_step(n, plan, wa, xa, lists[n - 1] if n else None, lists[n], pre, ext, dm)
            sd = side[n]
            if n < 4: sd = stats_side(n) + sd; lead = 2 if n else 0
            o += merge(m, sd, lead)
            if n == 3: o += stats_write()
            if n in (3, 7, 11, 13): o += cs_write()
        else:
            m = p2_step(n - P0, plan, rt, rw, lists[n - 1] if n == P0 else None, pre, ext, dm)
            o += merge(m, side[n], lead if att else 0)
        o += tail[n] + plan.checks(n)
    return o, final(plan), plan

def text():
    global ST
    st = State(); ST = Stamper()
    lines = process(ST(True) + prologue(), st)
    st0 = st.clone(); s0 = ST.clone()
    for att in (True, False):
        st = st0.clone(); ST = s0.clone()
        if not att: lines.append("L_mlp:")
        o, (f0, ta, lab, tb), plan = path(att)
        print("att" if att else "mlp", {n: [(x, plan.slot[x]) for x in v] for n, v in plan.issue.items() if v}, {k: plan.slot[k] for k in plan.res}, file=sys.stderr)
        lines += process(o + f0, st)
        st2 = st.clone(); c = ST.clone()
        lines += process(ta + ST.dump(), st) + ["    s_endpgm", lab + ":"] + process(tb + c.dump(), st2)
        if not att: lines.append("L_end:")
        lines.append("    s_endpgm")
    return "\n".join(lines)

def main(path_):
    k = NAME + "_kernel"
    s = "; hedgehog linear attention + mish MLP, fused; generated by gen/gen2.py\n"
    s += "; @launch grid=(256,1,1) block=(512,1,1) lds=163840\n"
    s += '.amdgcn_target "amdgcn-amd-amdhsa--gfx950"\n.text\n'
    s += f".globl {k}\n.p2align 8\n.type {k},@function\n{k}:\n{text()}\n"
    s += ".fill 2816, 4, 0xbf800000\n"
    s += f""".section .rodata,"a"
.p2align 6
.amdhsa_kernel {k}
  .amdhsa_next_free_vgpr 256
  .amdhsa_next_free_sgpr 102
  .amdhsa_accum_offset 256
  .amdhsa_group_segment_fixed_size 0
  .amdhsa_kernarg_size 88
  .amdhsa_user_sgpr_count 2
  .amdhsa_user_sgpr_kernarg_segment_ptr 1
  .amdhsa_system_sgpr_workgroup_id_x 1
.end_amdhsa_kernel
"""
    open(path_, "w").write(s)
if __name__ == "__main__":
    for a in sys.argv[2:]:
        k, v = a.split("="); OPT[k] = int(v, 0)
    main(sys.argv[1])
```
